```python
import torch

def _softmax(x, axis=-1):
    return torch.softmax(x, dim=axis)
def _gelu(x):
    return torch.nn.functional.gelu(x, approximate="tanh")
def _silu(x):
    return torch.nn.functional.silu(x)
def _sigmoid(x):
    return torch.sigmoid(x)
def _layernorm(x, axis=-1, eps=1e-5):
    m = x.mean(dim=axis, keepdim=True)
    v = x.var(dim=axis, keepdim=True, unbiased=False)
    return (x - m) / torch.sqrt(v + eps)
def _scatter_add(tgt, idx, src, axis=0):
    return tgt.clone().index_add_(axis, idx, src)
def _segment_sum(src, seg, n):
    out = torch.zeros((n,) + src.shape[1:], dtype=src.dtype)
    return out.index_add_(0, seg, src)
def _pad(x, pw):
    flat = tuple(v for pair in reversed(pw) for v in pair)
    return torch.nn.functional.pad(x, flat)

kernel_name = 'sequential_preLN__linear_kernel_hedgehog__dense_activation_silu__prompt'

def setup_inputs():

    _w = (lambda a: (lambda t: t.to(torch.bfloat16) if t.is_floating_point() else t)(torch.as_tensor(a)))
    def _A_setup():
        B, S, D, H = 1, 2048, 640, 32
        Dh = D // H
        return {
            "x": _w((lambda *s: torch.randn(*s, dtype=torch.bfloat16) * 0.05)(B, S, D)),
            "wqkv": _w((lambda *s: torch.randn(*s, dtype=torch.bfloat16) * 0.2)(D, 3 * D)),
            "w_phi": _w((lambda *s: torch.randn(*s, dtype=torch.bfloat16) * 0.2)(H, Dh, Dh) * (Dh ** -0.5)),
            "wo": _w((lambda *s: torch.randn(*s, dtype=torch.bfloat16) * 0.05)(D, D)),
        }
    _A_in = _A_setup()

    def _B_setup():
        B, S, D, F = 1, 2048, 640, 1728
        return {
            "x": _w((lambda *s: torch.randn(*s, dtype=torch.bfloat16) * 0.05)(B, S, D)),
            "w1": _w((lambda *s: torch.randn(*s, dtype=torch.bfloat16) * 1.6)(D, F) * (D ** -0.5)),
            "w2": _w((lambda *s: torch.randn(*s, dtype=torch.bfloat16) * 0.2)(F, D) * (F ** -0.5)),
        }
    _B_in = _B_setup()

    return {
        "A_x": _A_in["x"],
        "A_wqkv": _A_in["wqkv"],
        "A_w_phi": _A_in["w_phi"],
        "A_wo": _A_in["wo"],
        "B_x": _B_in["x"],
        "B_w1": _B_in["w1"],
        "B_w2": _B_in["w2"],
    }

def reference(A_x, A_wqkv, A_w_phi, A_wo, B_x, B_w1, B_w2):
    def _A_ref(x, wqkv, w_phi, wo):
        B, S, D = x.shape
        H = 32; Dh = D // H
        qkv = (lambda x, *d: x.permute(*d))((x @ wqkv).reshape(B, S, 3, H, Dh), 2, 0, 3, 1, 4)
        q, k, v = qkv[0], qkv[1], qkv[2]
        pq = torch.einsum("bhsd,hdf->bhsf", q, w_phi)
        pk = torch.einsum("bhsd,hdf->bhsf", k, w_phi)
        phi_q = torch.concatenate([_softmax(pq, axis=-1), _softmax(-pq, axis=-1)], axis=-1)
        phi_k = torch.concatenate([_softmax(pk, axis=-1), _softmax(-pk, axis=-1)], axis=-1)
        kv = torch.einsum("bhsf,bhsd->bhfd", phi_k, v)
        z  = torch.einsum("bhsf->bhf", phi_k)
        num = torch.einsum("bhqf,bhfd->bhqd", phi_q, kv)
        den = torch.einsum("bhqf,bhf->bhq", phi_q, z)[..., None] + 1e-6
        o = num / den
        return (lambda x, *d: x.permute(*d))(o, 0, 2, 1, 3).reshape(B, S, D) @ wo

    def _B_ref(x, w1, w2):
        h = torch.einsum("bsd,df->bsf", x, w1)
        h = _silu(h)
        out = torch.einsum("bsf,fd->bsd", h, w2)
        return out

    x = A_x
    h = x + _A_ref(_layernorm(x, axis=-1), A_wqkv, A_w_phi, A_wo)
    h2 = h + _B_ref(_layernorm(h, axis=-1), B_w1, B_w2)
    return h2
```

```python
class K:
    def __init__(self, name, nvgpr=256, nsgpr=102, lds=0):
        self.name = name
        self.lines = []
        self.nvgpr = nvgpr
        self.nsgpr = nsgpr
        self.vm_q = []
        self.lg_q = []
        self.lab = 0
    def e(self, s):
        if s.startswith("buffer_") and "offset:" in s:
            import re
            assert int(re.search(r"offset:(\d+)", s).group(1)) <= 4095, s
        if s.startswith("ds_") and "offset:" in s:
            import re
            assert int(re.search(r"offset:(\d+)", s).group(1)) <= 65535, s
        self.lines.append("    " + s)
    def c(self, s):
        self.lines.append("    ; " + s)
    def label(self, l):
        self.lines.append(l + ":")
    def newlabel(self, base="L"):
        self.lab += 1
        return "%s_%s_%d" % (base, self.name, self.lab)
    def vm(self, instr, tag=None):
        self.e(instr)
        self.vm_q.append(tag)
    def wait_vm(self, tag=None, all=False):
        if all or tag is None:
            n = 0
            self.vm_q = []
        else:
            idxs = [i for i, t in enumerate(self.vm_q) if t == tag]
            if not idxs:
                return
            idx = max(idxs)
            n = len(self.vm_q) - 1 - idx
            self.vm_q = self.vm_q[idx + 1:]
        assert n <= 63
        self.e("s_waitcnt vmcnt(%d)" % n)
    def lg(self, instr, tag=None):
        self.e(instr)
        self.lg_q.append(tag)
    def wait_lg(self, tag=None):
        if tag is None:
            n = 0
            self.lg_q = []
        else:
            idx = max(i for i, t in enumerate(self.lg_q) if t == tag)
            n = len(self.lg_q) - 1 - idx
            self.lg_q = self.lg_q[idx + 1:]
        assert n <= 15
        self.e("s_waitcnt lgkmcnt(%d)" % n)
    def text(self):
        nm = self.name
        out = [".text", ".globl %s" % nm, ".p2align 8", ".type %s,@function" % nm, "%s:" % nm]
        out += self.lines
        out.append("    s_endpgm")
        return "\n".join(out) + "\n"
    def desc(self):
        acc = min(256, (self.nvgpr + 3) // 4 * 4)
        return """.amdhsa_kernel %s
  .amdhsa_next_free_vgpr %d
  .amdhsa_next_free_sgpr %d
  .amdhsa_accum_offset %d
  .amdhsa_group_segment_fixed_size 0
  .amdhsa_kernarg_size 80
  .amdhsa_user_sgpr_count 2
  .amdhsa_user_sgpr_kernarg_segment_ptr 1
  .amdhsa_system_sgpr_workgroup_id_x 1
.end_amdhsa_kernel
""" % (nm_fix(self.name), self.nvgpr, self.nsgpr, acc)

def nm_fix(n):
    return n

def build_file(header_lines, kernels):
    s = []
    for h in header_lines:
        s.append("; " + h)
    for (k, grid, block, lds) in kernels:
        s.append("; @launch kernel=%s grid=(%d,%d,%d) block=(%d,%d,%d) lds=%d" % ((k.name,) + tuple(grid) + tuple(block) + (lds,)))
    s.append('.amdgcn_target "amdgcn-amd-amdhsa--gfx950"')
    seen = set()
    for (k, grid, block, lds) in kernels:
        if k.name in seen: continue
        seen.add(k.name)
        s.append(k.text())
    s.append('.section .rodata,"a"')
    seen = set()
    for (k, grid, block, lds) in kernels:
        if k.name in seen: continue
        seen.add(k.name)
        s.append(".p2align 6")
        s.append(k.desc())
    return "\n".join(s)

def srd(k, sreg, ptr_lo, nbytes, off=0):
    if off:
        k.e("s_add_u32 s%d, s%d, 0x%x" % (sreg, ptr_lo, off))
        k.e("s_addc_u32 s%d, s%d, 0" % (sreg + 1, ptr_lo + 1))
    else:
        k.e("s_mov_b32 s%d, s%d" % (sreg, ptr_lo))
        k.e("s_mov_b32 s%d, s%d" % (sreg + 1, ptr_lo + 1))
    k.e("s_mov_b32 s%d, 0x%x" % (sreg + 2, nbytes))
    k.e("s_mov_b32 s%d, 0x00020000" % (sreg + 3))
```

```python
from asmgen import *
import sys

NAME = "sequential_preLN__linear_kernel_hedgehog__dense_activation_silu__prompt"
WS_PHIQ = 0
WS_KVP  = 0x600000
WS_O    = 0xA00000
WS_H    = 0xD00000
WS_H1   = 0x1000000
SZ_X    = 2048*640*2
SZ_PHIQ = 2048*32*40*2
SZ_KVP  = 32*32*840*4
SZ_H1   = 2048*1728*2

A_STRIDE = 1312
A_BYTES  = 64*A_STRIDE
B_STAGE  = 32*480
NSTAGE   = 4
B_BASE   = A_BYTES
WP_BASE  = B_BASE + NSTAGE*B_STAGE
K1_LDS   = WP_BASE + 8192
T_BASE   = 0
T_STRIDE = 496
P_BASE   = 32768
PHIK_BASE = 73728

LOG2E = 0x3fb8aa3b

def lane_ids(k):
    k.e("v_and_b32 v1, 63, v0")
    k.e("v_lshrrev_b32 v2, 4, v1")
    k.e("v_and_b32 v3, 15, v1")
    k.e("v_lshrrev_b32 v4, 6, v0")
    k.e("s_nop 0")
    k.e("v_readfirstlane_b32 s30, v4")

def ln_prologue(k, srd_x, s_row0):
    k.c("---- LN prologue: loads")
    k.e("v_lshrrev_b32 v5, 3, v0")
    k.e("v_and_b32 v6, 7, v0")
    k.e("v_add_u32 v7, %s, v5" % s_row0)
    k.e("v_mul_u32_u24 v7, 1280, v7")
    k.e("v_lshl_add_u32 v7, v6, 4, v7")
    for j in range(10):
        k.vm("buffer_load_dwordx4 v[%d:%d], v7, s[%d:%d], 0 offen offset:%d" % (16+4*j, 19+4*j, srd_x, srd_x+3, j*128), "x")

def ln_compute(k):
    k.c("---- LN compute")
    k.wait_vm("x")
    k.e("v_mov_b32 v56, 0x3f803f80")
    k.e("v_mov_b32 v57, 0")
    k.e("v_mov_b32 v58, 0")
    for r in range(16, 56, 2):
        k.e("v_dot2_f32_bf16 v57, v%d, v56, v57" % r)
        k.e("v_dot2_f32_bf16 v58, v%d, v56, v58" % (r+1))
    k.e("v_add_f32 v57, v57, v58")
    def red8(v):
        k.e("s_nop 1")
        k.e("v_add_f32_dpp v59, %s, %s quad_perm:[1,0,3,2] row_mask:0xf bank_mask:0xf" % (v, v))
        k.e("s_nop 1")
        k.e("v_add_f32_dpp %s, v59, v59 quad_perm:[2,3,0,1] row_mask:0xf bank_mask:0xf" % v)
        k.e("s_nop 1")
        k.e("v_add_f32_dpp v59, %s, %s row_half_mirror row_mask:0xf bank_mask:0xf" % (v, v))
        k.e("v_mov_b32 %s, v59" % v)
    red8("v57")
    k.e("v_mul_f32 v57, 0x3acccccd, v57")
    k.e("v_mov_b32 v60, 0"); k.e("v_mov_b32 v61, 0")
    k.e("v_mov_b32 v62, v57"); k.e("v_mov_b32 v63, v57")
    for r in range(16, 56):
        k.e("v_lshlrev_b32 v64, 16, v%d" % r)
        k.e("v_and_b32 v65, 0xffff0000, v%d" % r)
        k.e("v_pk_add_f32 v[64:65], v[64:65], v[62:63] neg_lo:[0,1] neg_hi:[0,1]")
        k.e("v_pk_fma_f32 v[60:61], v[64:65], v[64:65], v[60:61]")
    k.e("v_add_f32 v60, v60, v61")
    red8("v60")
    k.e("v_mul_f32 v60, 0x3acccccd, v60")
    k.e("v_cvt_pk_bf16_f32 v61, v57, v60")
    k.e("v_lshlrev_b32 v62, 16, v61")
    k.e("v_and_b32 v63, 0xffff0000, v61")
    k.e("v_add_f32 v63, 0x3727c5ac, v63")
    k.e("v_cvt_pk_bf16_f32 v63, v63, v63")
    k.e("v_and_b32 v63, 0xffff0000, v63")
    k.e("v_sqrt_f32 v63, v63")
    k.e("s_nop 0")
    k.e("v_cvt_pk_bf16_f32 v63, v63, v63")
    k.e("v_and_b32 v63, 0xffff0000, v63")
    k.e("v_rcp_f32 v66, v63")
    k.e("s_nop 0")
    k.e("v_mov_b32 v67, v66")
    k.e("v_mov_b32 v63, v62")
    k.e("v_mul_u32_u24 v68, %d, v5" % A_STRIDE)
    k.e("v_lshrrev_b32 v69, 2, v6")
    k.e("v_lshl_add_u32 v68, v69, 6, v68")
    k.e("v_and_b32 v69, 1, v6")
    k.e("v_lshl_add_u32 v68, v69, 5, v68")
    k.e("v_bfe_u32 v69, v6, 1, 1")
    k.e("v_lshl_add_u32 v68, v69, 3, v68")
    for j in range(10):
        for h in range(2):
            outs = []
            for d in range(2):
                r = 16 + 4*j + 2*h + d
                k.e("v_lshlrev_b32 v70, 16, v%d" % r)
                k.e("v_and_b32 v71, 0xffff0000, v%d" % r)
                k.e("v_pk_add_f32 v[70:71], v[70:71], v[62:63] neg_lo:[0,1] neg_hi:[0,1]")
                k.e("v_cvt_pk_bf16_f32 v72, v70, v71")
                k.e("v_lshlrev_b32 v70, 16, v72")
                k.e("v_and_b32 v71, 0xffff0000, v72")
                k.e("v_pk_mul_f32 v[70:71], v[70:71], v[66:67]")
                k.e("v_cvt_pk_bf16_f32 v%d, v70, v71" % (74+d))
            k.lg("ds_write_b64 v68, v[74:75] offset:%d" % (j*128 + 16*h))

def dma_setup_240(k, col_expr_setup):
    pass

def main_loop_Ares(k, srd_w, nk=20):
    ACC = 96; AF = 128; BF = 144
    def dma(st):
        k.e("s_mov_b32 s33, 0x%x" % (st*32*3840) if srd_w == 12 else "s_mov_b32 s33, 0x%x" % (st*32*3456))
        base = B_BASE + (st % NSTAGE)*B_STAGE
        k.e("s_add_u32 s34, s35, 0x%x" % base)
        k.e("s_mov_b32 m0, s34")
        k.e("s_nop 0")
        k.vm("buffer_load_dwordx4 v8, s[%d:%d], s33 offen lds" % (srd_w, srd_w+3), "dma%d" % st)
        k.e("s_add_u32 s34, s34, 1024")
        k.e("s_mov_b32 m0, s34")
        k.e("s_mov_b64 exec, s[36:37]")
        k.vm("buffer_load_dwordx4 v9, s[%d:%d], s33 offen lds" % (srd_w, srd_w+3), "dma%d" % st)
        k.e("s_mov_b64 exec, -1")
    def reads(kk):
        b = kk & 1
        for mt in range(2):
            k.lg("ds_read_b128 v[%d:%d], v10 offset:%d" % (AF+b*8+mt*4, AF+b*8+mt*4+3, kk*64 + mt*16*A_STRIDE))
        sb = (kk % NSTAGE)*B_STAGE
        for t in range(4):
            r = BF + b*16 + t*4
            k.lg("ds_read_b64_tr_b16 v[%d:%d], v11 offset:%d" % (r, r+1, sb + t*32))
            k.lg("ds_read_b64_tr_b16 v[%d:%d], v11 offset:%d" % (r+2, r+3, sb + t*32 + 16*480))
    for i in range(NSTAGE):
        dma(i)
    return dma, reads, ACC, AF, BF

def run_main_loop(k, dma, reads, ACC, AF, BF, nk=20):
    k.c("---- main loop")
    for r in range(32):
        k.e("v_mov_b32 v%d, 0" % (ACC + r))
    k.wait_vm("dma0")
    k.e("s_waitcnt lgkmcnt(0)"); k.lg_q = []
    k.e("s_barrier")
    reads(0)
    for kk in range(nk):
        k.e("s_waitcnt lgkmcnt(0)"); k.lg_q = []
        if kk + 1 < nk:
            k.wait_vm("dma%d" % (kk+1))
        k.e("s_barrier")
        if kk + NSTAGE < nk:
            dma(kk + NSTAGE)
        if kk + 1 < nk:
            reads(kk + 1)
        b = kk & 1
        for mt in range(2):
            for t in range(4):
                a = ACC + (mt*4 + t)*4
                k.e("v_mfma_f32_16x16x32_bf16 v[%d:%d], v[%d:%d], v[%d:%d], v[%d:%d]" %
                    (a, a+3, BF+b*16+t*4, BF+b*16+t*4+3, AF+b*8+mt*4, AF+b*8+mt*4+3, a, a+3))
    k.e("s_nop 7"); k.e("s_nop 7")

def frag_addr_setup(k):
    k.e("s_and_b32 s31, s30, 1")
    k.e("s_lshr_b32 s32, s30, 1")
    k.e("s_mul_i32 s33, s31, %d" % (32*A_STRIDE))
    k.e("v_mul_u32_u24 v10, %d, v3" % A_STRIDE)
    k.e("v_lshl_add_u32 v10, v2, 4, v10")
    k.e("v_add_u32 v10, s33, v10")
    k.e("v_lshrrev_b32 v11, 2, v3")
    k.e("v_lshl_add_u32 v11, v2, 2, v11")
    k.e("v_mul_u32_u24 v11, 480, v11")
    k.e("v_and_b32 v12, 3, v3")
    k.e("v_lshl_add_u32 v11, v12, 3, v11")
    k.e("s_lshl_b32 s33, s32, 7")
    k.e("s_add_u32 s33, s33, %d" % B_BASE)
    k.e("v_add_u32 v11, s33, v11")

def gen_k1():
    k = K("hh_k1_kernel", nvgpr=256)
    k.e("s_cmp_ge_u32 s2, 256")
    lend = "L_k1_end"
    k.e("s_cbranch_scc1 %s" % lend)
    k.e("s_load_dwordx4 s[4:7], s[0:1], 0")
    k.e("s_load_dwordx2 s[38:39], s[0:1], 16")
    k.e("s_load_dwordx2 s[40:41], s[0:1], 72")
    k.e("s_lshr_b32 s28, s2, 3")
    k.e("s_and_b32 s29, s2, 7")
    lane_ids(k)
    k.e("s_waitcnt lgkmcnt(0)")
    srd(k, 8, 4, SZ_X)
    srd(k, 12, 6, 640*1920*2)
    srd(k, 16, 38, 32*400*2)
    srd(k, 20, 40, SZ_PHIQ, WS_PHIQ)
    srd(k, 24, 40, SZ_KVP, WS_KVP)
    k.e("s_lshl_b32 s42, s28, 6")
    ln_prologue(k, 8, "s42")
    k.e("s_mul_i32 s35, s30, 1920")
    k.e("s_mul_i32 s33, s30, 120")
    k.e("s_mul_i32 s34, s29, 160")
    k.e("s_mov_b32 s36, -1"); k.e("s_mov_b32 s37, 0x00ffffff")
    for vi, add in ((8, 0), (9, 64)):
        k.e("v_add_u32 v12, s33, v1")
        if add: k.e("v_add_u32 v12, %d, v12" % add)
        k.e("v_mul_u32_u24 v13, 2185, v12"); k.e("v_lshrrev_b32 v13, 16, v13")
        k.e("v_mul_u32_u24 v14, 30, v13"); k.e("v_sub_u32 v14, v12, v14")
        k.e("v_mul_u32_u24 v15, 6554, v14"); k.e("v_lshrrev_b32 v15, 16, v15")
        k.e("v_mul_u32_u24 v%d, 3840, v13" % vi)
        k.e("v_mul_u32_u24 v13, 1280, v15"); k.e("v_add_u32 v%d, v%d, v13" % (vi, vi))
        k.e("v_mul_u32_u24 v15, 10, v15"); k.e("v_sub_u32 v14, v14, v15")
        k.e("v_lshl_add_u32 v%d, v14, 4, v%d" % (vi, vi))
        k.e("v_add_u32 v%d, s34, v%d" % (vi, vi))
    k.e("s_mul_i32 s33, s29, 3200")
    k.e("v_lshlrev_b32 v81, 3, v0")
    k.e("v_add_u32 v81, s33, v81")
    k.e("v_cmp_gt_u32 vcc, 400, v0")
    k.e("s_and_saveexec_b64 s[44:45], vcc")
    k.vm("buffer_load_dwordx2 v[82:83], v81, s[16:19], 0 offen", "wphi")
    k.e("s_mov_b64 exec, s[44:45]")
    dma, reads, ACC, AF, BF = main_loop_Ares(k, 12)
    k.e("v_mov_b32 v76, 0"); k.e("v_mov_b32 v77, 0"); k.e("v_mov_b32 v78, 0"); k.e("v_mov_b32 v79, 0")
    k.e("v_lshlrev_b32 v80, 4, v0")
    k.e("v_add_u32 v80, %d, v80" % WP_BASE)
    k.lg("ds_write_b128 v80, v[76:79]")
    ln_compute(k)
    frag_addr_setup(k)
    k.e("v_mul_u32_u24 v84, 656, v0"); k.e("v_lshrrev_b32 v84, 16, v84")
    k.e("v_mul_u32_u24 v85, 100, v84"); k.e("v_sub_u32 v85, v0, v85")
    k.e("v_mul_u32_u24 v86, 13108, v85"); k.e("v_lshrrev_b32 v86, 16, v86")
    k.e("v_mul_u32_u24 v87, 5, v86"); k.e("v_sub_u32 v87, v85, v87")
    k.e("v_lshlrev_b32 v84, 11, v84")
    k.e("v_lshl_add_u32 v84, v86, 6, v84")
    k.e("v_lshl_add_u32 v84, v87, 3, v84")
    k.e("v_add_u32 v84, %d, v84" % WP_BASE)
    k.wait_vm("wphi")
    k.e("s_waitcnt lgkmcnt(0)"); k.lg_q = []
    k.e("s_barrier")
    k.e("v_cmp_gt_u32 vcc, 400, v0")
    k.e("s_and_saveexec_b64 s[44:45], vcc")
    k.lg("ds_write_b64 v84, v[82:83]")
    k.e("s_mov_b64 exec, s[44:45]")
    run_main_loop(k, dma, reads, ACC, AF, BF)
    k1_epilogue(k, ACC)
    k.label(lend)
    return k

def k1_epilogue(k, ACC):
    k.c("---- epilogue: q,k,v tile to LDS (bf16)")
    k.e("s_barrier")
    k.e("s_mul_i32 s33, s31, %d" % (32*T_STRIDE))
    k.e("s_lshl_b32 s34, s32, 7")
    k.e("s_add_u32 s33, s33, s34")
    k.e("v_mul_u32_u24 v12, %d, v3" % T_STRIDE)
    k.e("v_lshl_add_u32 v12, v2, 3, v12")
    k.e("v_add_u32 v12, s33, v12")
    skip = k.newlabel("L_skip_t3")
    for t in range(4):
        if t == 3:
            k.e("s_cmp_eq_u32 s32, 3")
            k.e("s_cbranch_scc1 %s" % skip)
        for mt in range(2):
            a = ACC + (mt*4 + t)*4
            k.e("v_cvt_pk_bf16_f32 v14, v%d, v%d" % (a, a+1))
            k.e("v_cvt_pk_bf16_f32 v15, v%d, v%d" % (a+2, a+3))
            k.lg("ds_write_b64 v12, v[14:15] offset:%d" % (T_BASE + mt*16*T_STRIDE + t*32))
    k.label(skip)
    k.e("s_waitcnt lgkmcnt(0)"); k.lg_q = []
    k.e("s_barrier")
    k.c("---- pq / pk : wave w -> head hh=w&3, which=w>>2")
    k.e("s_and_b32 s43, s30, 3")
    k.e("s_lshr_b32 s46, s30, 2")
    k.e("s_mul_i32 s33, s46, 160")
    k.e("s_mul_i32 s34, s43, 40")
    k.e("s_add_u32 s33, s33, s34")
    k.e("v_mul_u32_u24 v12, %d, v3" % T_STRIDE)
    k.e("v_lshl_add_u32 v12, v2, 3, v12")
    k.e("v_add_u32 v12, s33, v12")
    XF = 16
    for mt in range(4):
        k.lg("ds_read_b64 v[%d:%d], v12 offset:%d" % (XF+mt*4, XF+mt*4+1, T_BASE + mt*16*T_STRIDE))
        k.lg("ds_read_b64 v[%d:%d], v12 offset:%d" % (XF+mt*4+2, XF+mt*4+3, T_BASE + mt*16*T_STRIDE + 32))
    k.e("v_lshrrev_b32 v13, 2, v3")
    k.e("v_lshl_add_u32 v13, v2, 2, v13")
    k.e("v_lshlrev_b32 v13, 6, v13")
    k.e("v_and_b32 v14, 3, v3")
    k.e("v_lshl_add_u32 v13, v14, 3, v13")
    k.e("s_lshl_b32 s33, s43, 11")
    k.e("s_add_u32 s33, s33, %d" % WP_BASE)
    k.e("v_add_u32 v13, s33, v13")
    WF = 32
    for ft in range(2):
        k.lg("ds_read_b64_tr_b16 v[%d:%d], v13 offset:%d" % (WF+ft*4, WF+ft*4+1, ft*32))
        k.lg("ds_read_b64_tr_b16 v[%d:%d], v13 offset:%d" % (WF+ft*4+2, WF+ft*4+3, ft*32 + 16*64))
    PD = 40
    for r in range(32):
        k.e("v_mov_b32 v%d, 0" % (PD + r))
    k.e("s_waitcnt lgkmcnt(0)"); k.lg_q = []
    k.e("s_nop 1")
    for mt in range(4):
        for ft in range(2):
            a = PD + (mt*2 + ft)*4
            k.e("v_mfma_f32_16x16x32_bf16 v[%d:%d], v[%d:%d], v[%d:%d], v[%d:%d]" %
                (a, a+3, WF+ft*4, WF+ft*4+3, XF+mt*4, XF+mt*4+3, a, a+3))
    k.e("s_nop 7"); k.e("s_nop 7")
    k.e("s_mul_i32 s33, s30, 5120")
    k.e("s_add_u32 s33, s33, %d" % P_BASE)
    k.e("v_mul_u32_u24 v12, 80, v3")
    k.e("v_lshl_add_u32 v12, v2, 3, v12")
    k.e("v_add_u32 v12, s33, v12")
    for mt in range(4):
        for ft in range(2):
            a = PD + (mt*2 + ft)*4
            k.e("v_cvt_pk_bf16_f32 v14, v%d, v%d" % (a, a+1))
            k.e("v_cvt_pk_bf16_f32 v15, v%d, v%d" % (a+2, a+3))
            k.lg("ds_write_b64 v12, v[14:15] offset:%d" % (mt*16*80 + ft*32))
    k.e("s_waitcnt lgkmcnt(0)"); k.lg_q = []
    k.c("---- dual softmax: lane = row")
    k.e("v_mul_u32_u24 v12, 80, v1")
    k.e("v_add_u32 v12, s33, v12")
    PV = 16
    for j in range(5):
        k.lg("ds_read_b64 v[%d:%d], v12 offset:%d" % (PV+2*j, PV+2*j+1, 8*j))
    k.e("s_waitcnt lgkmcnt(0)"); k.lg_q = []
    U = 28
    for j in range(10):
        k.e("v_lshlrev_b32 v%d, 16, v%d" % (U+2*j, PV+j))
        k.e("v_and_b32 v%d, 0xffff0000, v%d" % (U+2*j+1, PV+j))
    k.e("v_max3_f32 v48, v%d, v%d, v%d" % (U, U+1, U+2))
    k.e("v_min3_f32 v49, v%d, v%d, v%d" % (U, U+1, U+2))
    for j in range(3, 19, 2):
        k.e("v_max3_f32 v48, v48, v%d, v%d" % (U+j, U+j+1))
        k.e("v_min3_f32 v49, v49, v%d, v%d" % (U+j, U+j+1))
    k.e("v_max_f32 v48, v48, v%d" % (U+19))
    k.e("v_min_f32 v49, v49, v%d" % (U+19))
    k.e("s_mov_b32 s47, 0x%x" % LOG2E)
    k.e("v_mul_f32 v50, s47, v48")
    k.e("v_mul_f32 v51, s47, v49")
    EP = 52; EN = 72
    for j in range(20):
        k.e("v_fma_f32 v%d, v%d, s47, -v50" % (EP+j, U+j))
        k.e("v_fma_f32 v%d, -v%d, s47, v51" % (EN+j, U+j))
    for j in range(20):
        k.e("v_exp_f32 v%d, v%d" % (EP+j, EP+j))
        k.e("v_exp_f32 v%d, v%d" % (EN+j, EN+j))
    k.e("s_nop 0")
    k.e("v_add_f32 v92, v%d, v%d" % (EP, EP+1))
    k.e("v_add_f32 v93, v%d, v%d" % (EN, EN+1))
    for j in range(2, 20):
        k.e("v_add_f32 v92, v92, v%d" % (EP+j))
        k.e("v_add_f32 v93, v93, v%d" % (EN+j))
    k.e("v_rcp_f32 v92, v92")
    k.e("v_rcp_f32 v93, v93")
    k.e("s_nop 0")
    PH = 16
    for j in range(10):
        k.e("v_mul_f32 v94, v%d, v92" % (EP+2*j))
        k.e("v_mul_f32 v95, v%d, v92" % (EP+2*j+1))
        k.e("v_cvt_pk_bf16_f32 v%d, v94, v95" % (PH+j))
    for j in range(10):
        k.e("v_mul_f32 v94, v%d, v93" % (EN+2*j))
        k.e("v_mul_f32 v95, v%d, v93" % (EN+2*j+1))
        k.e("v_cvt_pk_bf16_f32 v%d, v94, v95" % (PH+10+j))
    lk = k.newlabel("L_phik"); ldone = k.newlabel("L_phidone")
    k.e("s_cmp_eq_u32 s46, 1")
    k.e("s_cbranch_scc1 %s" % lk)
    k.e("s_lshl_b32 s33, s29, 2"); k.e("s_add_u32 s33, s33, s43")
    k.e("s_mul_i32 s33, s33, 80")
    k.e("v_add_u32 v12, s42, v1")
    k.e("v_mul_u32_u24 v12, 2560, v12")
    k.e("v_add_u32 v12, s33, v12")
    for j in range(5):
        k.vm("buffer_store_dwordx4 v[%d:%d], v12, s[20:23], 0 offen offset:%d" % (PH+4*j, PH+4*j+3, 16*j), "st")
    k.e("s_branch %s" % ldone)
    k.label(lk)
    k.e("s_mul_i32 s33, s43, 6144")
    k.e("s_add_u32 s33, s33, %d" % PHIK_BASE)
    k.e("v_mul_u32_u24 v12, 96, v1")
    k.e("v_add_u32 v12, s33, v12")
    for j in range(5):
        k.e("ds_write_b128 v12, v[%d:%d] offset:%d" % (PH+4*j, PH+4*j+3, 16*j))
    k.label(ldone)
    k.e("s_waitcnt lgkmcnt(0)")
    k.e("s_barrier")
    k.c("---- partial kv = phi_k^T [v | 1] for head hh = wave (waves 0..3)")
    lfin = k.newlabel("L_kv_skip")
    k.e("s_cmp_ge_u32 s30, 4")
    k.e("s_cbranch_scc1 %s" % lfin)
    k.e("v_lshrrev_b32 v13, 2, v3")
    k.e("v_lshl_add_u32 v13, v2, 2, v13")
    k.e("v_and_b32 v14, 3, v3")
    k.e("v_mul_u32_u24 v15, 96, v13")
    k.e("v_lshl_add_u32 v15, v14, 3, v15")
    k.e("s_mul_i32 s33, s30, 6144")
    k.e("s_add_u32 s33, s33, %d" % PHIK_BASE)
    k.e("v_add_u32 v15, s33, v15")
    k.e("v_mul_u32_u24 v16, %d, v13" % T_STRIDE)
    k.e("v_lshl_add_u32 v16, v14, 3, v16")
    k.e("s_mul_i32 s33, s30, 40")
    k.e("s_add_u32 s33, s33, %d" % (T_BASE + 320))
    k.e("v_add_u32 v16, s33, v16")
    KF = 20
    VF = 44
    KD = 60
    for ks in range(2):
        for mt in range(3):
            r = KF + (ks*3+mt)*4
            k.e("ds_read_b64_tr_b16 v[%d:%d], v15 offset:%d" % (r, r+1, ks*32*96 + mt*32))
            k.e("ds_read_b64_tr_b16 v[%d:%d], v15 offset:%d" % (r+2, r+3, ks*32*96 + mt*32 + 16*96))
        for nt in range(2):
            r = VF + (ks*2+nt)*4
            k.e("ds_read_b64_tr_b16 v[%d:%d], v16 offset:%d" % (r, r+1, ks*32*T_STRIDE + nt*32))
            k.e("ds_read_b64_tr_b16 v[%d:%d], v16 offset:%d" % (r+2, r+3, ks*32*T_STRIDE + nt*32 + 16*T_STRIDE))
    for r in range(24):
        k.e("v_mov_b32 v%d, 0" % (KD + r))
    k.e("v_mov_b32 v17, 0x3f803f80")
    k.e("v_cmp_eq_u32 vcc, 4, v3")
    k.e("s_waitcnt lgkmcnt(0)")
    for ks in range(2):
        r = VF + (ks*2+1)*4
        for q in range(4):
            k.e("v_cndmask_b32 v%d, v%d, v17, vcc" % (r+q, r+q))
    k.e("s_nop 1")
    for ks in range(2):
        for mt in range(3):
            for nt in range(2):
                a = KD + (mt*2+nt)*4
                kf = KF + (ks*3+mt)*4; vf = VF + (ks*2+nt)*4
                k.e("v_mfma_f32_16x16x32_bf16 v[%d:%d], v[%d:%d], v[%d:%d], v[%d:%d]" %
                    (a, a+3, kf, kf+3, vf, vf+3, a, a+3))
    k.e("s_nop 7"); k.e("s_nop 7")
    k.e("s_lshl_b32 s33, s28, 5")
    k.e("s_lshl_b32 s34, s29, 2")
    k.e("s_add_u32 s33, s33, s34")
    k.e("s_add_u32 s33, s33, s30")
    k.e("s_mul_i32 s33, s33, %d" % (21*160))
    k.e("v_mul_u32_u24 v12, 160, v3")
    k.e("v_lshl_add_u32 v12, v2, 4, v12")
    k.e("v_add_u32 v12, s33, v12")
    for nt in range(2):
        for mt in range(3):
            a = KD + (mt*2+nt)*4
            conds = []
            if nt == 1: conds.append("v_cmp_ge_u32 vcc, 4, v3")
            if mt == 2: conds.append("v_cmp_gt_u32 vcc, 2, v2")
            if conds:
                k.e("s_mov_b64 s[44:45], exec")
                for cnd in conds:
                    k.e(cnd)
                    k.e("s_and_b64 exec, exec, vcc")
            k.e("buffer_store_dwordx4 v[%d:%d], v12, s[24:27], 0 offen offset:%d" % (a, a+3, nt*16*160 + mt*64))
            if conds:
                k.e("s_mov_b64 exec, s[44:45]")
    k.label(lfin)
    k.e("s_waitcnt vmcnt(0)")

if __name__ == "__main__":
    k1 = gen_k1()
    txt = build_file(["dev build"], [(k1, (256,1,1), (512,1,1), K1_LDS)])
    open("k1.s", "w").write(txt)
    print("lines", txt.count("\n"))
```

```python
from gen import *

KVB_STRIDE = 144
def gen_kr():
    k = K("hh_kr_kernel", nvgpr=192)
    lend = "L_kr_end"
    k.e("s_cmp_ge_u32 s2, 256")
    k.e("s_cbranch_scc1 %s" % lend)
    k.e("s_load_dwordx2 s[40:41], s[0:1], 72")
    k.e("s_lshr_b32 s28, s2, 3")
    k.e("s_and_b32 s29, s2, 7")
    lane_ids(k)
    k.e("s_waitcnt lgkmcnt(0)")
    srd(k, 8, 40, SZ_KVP, WS_KVP)
    srd(k, 12, 40, SZ_PHIQ, WS_PHIQ)
    srd(k, 16, 40, SZ_X, WS_O)
    for r in range(4): k.e("v_mov_b32 v%d, 0" % (4+r))
    k.e("v_lshlrev_b32 v8, 4, v0")
    k.e("ds_write_b128 v8, v[4:7]")
    k.e("v_cmp_gt_u32 vcc, 64, v0")
    k.e("s_and_saveexec_b64 s[44:45], vcc")
    k.e("ds_write_b128 v8, v[4:7] offset:4096")
    k.e("s_mov_b64 exec, s[44:45]")
    k.e("s_mul_i32 s33, s28, 3360")
    k.e("v_lshlrev_b32 v9, 4, v0")
    k.e("v_add_u32 v9, s33, v9")
    k.e("v_cmp_gt_u32 vcc, 210, v0")
    k.e("s_and_saveexec_b64 s[44:45], vcc")
    for rb in range(32):
        k.e("s_mov_b32 s33, %d" % (rb*107520))
        k.e("buffer_load_dwordx4 v[%d:%d], v9, s[8:11], s33 offen" % (64+4*rb, 67+4*rb))
    k.e("s_mov_b64 exec, s[44:45]")
    k.e("s_lshl_b32 s33, s29, 8")
    k.e("s_lshl_b32 s34, s30, 6")
    k.e("s_add_u32 s33, s33, s34")
    k.e("v_add_u32 v10, s33, v3")
    k.e("v_mul_u32_u24 v11, 2560, v10")
    k.e("s_mul_i32 s34, s28, 80")
    k.e("v_lshl_add_u32 v11, v2, 4, v11")
    k.e("v_add_u32 v11, s34, v11")
    PF = 16
    for st in range(4):
        k.e("s_mov_b32 s35, %d" % (st*16*2560))
        k.e("buffer_load_dwordx4 v[%d:%d], v11, s[12:15], s35 offen" % (PF+st*8, PF+st*8+3))
        k.e("buffer_load_dwordx4 v[%d:%d], v11, s[12:15], s35 offen offset:64" % (PF+st*8+4, PF+st*8+7))
    k.e("s_waitcnt vmcnt(8)")
    k.e("v_cmp_gt_u32 vcc, 210, v0")
    k.e("s_and_saveexec_b64 s[44:45], vcc")
    for rb in range(1, 32):
        for q in range(0, 4, 2):
            k.e("v_pk_add_f32 v[%d:%d], v[%d:%d], v[%d:%d]" % (64+q, 65+q, 64+q, 65+q, 64+4*rb+q, 65+4*rb+q))
    k.e("v_cvt_pk_bf16_f32 v12, v64, v65")
    k.e("v_cvt_pk_bf16_f32 v13, v66, v67")
    k.e("v_mul_u32_u24 v14, 6554, v0"); k.e("v_lshrrev_b32 v14, 16, v14")
    k.e("v_mul_u32_u24 v15, 10, v14"); k.e("v_sub_u32 v15, v0, v15")
    k.e("v_mul_u32_u24 v14, %d, v14" % KVB_STRIDE)
    k.e("v_lshl_add_u32 v14, v15, 3, v14")
    k.e("s_waitcnt lgkmcnt(0)")
    k.e("s_barrier")
    k.e("ds_write_b64 v14, v[12:13]")
    k.e("s_mov_b64 exec, s[44:45]")
    k.e("s_waitcnt lgkmcnt(0)")
    k.e("s_barrier")
    KF = 48
    k.e("v_mul_u32_u24 v12, %d, v3" % KVB_STRIDE)
    k.e("v_lshl_add_u32 v12, v2, 4, v12")
    for ks in range(2):
        for dt in range(2):
            r = KF + (ks*2+dt)*4
            k.e("ds_read_b128 v[%d:%d], v12 offset:%d" % (r, r+3, dt*16*KVB_STRIDE + ks*64))
    k.e("v_lshlrev_b32 v13, 4, v2")
    for ks in range(2):
        k.e("ds_read_b128 v[%d:%d], v13 offset:%d" % (64+ks*4, 67+ks*4, 20*KVB_STRIDE + ks*64))
    k.e("v_mul_u32_u24 v14, 1280, v10")
    k.e("s_mul_i32 s34, s28, 40")
    k.e("v_lshl_add_u32 v14, v2, 3, v14")
    k.e("v_add_u32 v14, s34, v14")
    k.e("s_waitcnt vmcnt(0) lgkmcnt(0)")
    D = 72
    for st in range(4):
        for r in range(12): k.e("v_mov_b32 v%d, 0" % (D+r))
        k.e("s_nop 1")
        for ks in range(2):
            pf = PF + st*8 + ks*4
            for dt in range(2):
                kf = KF + (ks*2+dt)*4
                k.e("v_mfma_f32_16x16x32_bf16 v[%d:%d], v[%d:%d], v[%d:%d], v[%d:%d]" % (D+dt*4, D+dt*4+3, kf, kf+3, pf, pf+3, D+dt*4, D+dt*4+3))
            k.e("v_mfma_f32_16x16x32_bf16 v[%d:%d], v[%d:%d], v[%d:%d], v[%d:%d]" % (D+8, D+11, 64+ks*4, 67+ks*4, pf, pf+3, D+8, D+11))
        k.e("s_nop 7"); k.e("s_nop 7")
        k.e("v_cvt_pk_bf16_f32 v84, v%d, v%d" % (D+8, D+8))
        k.e("v_and_b32 v84, 0xffff0000, v84")
        k.e("v_add_f32 v84, 0x358637bd, v84")
        k.e("v_cvt_pk_bf16_f32 v84, v84, v84")
        k.e("v_and_b32 v84, 0xffff0000, v84")
        k.e("v_rcp_f32 v84, v84")
        for dt in range(2):
            k.e("v_cvt_pk_bf16_f32 v86, v%d, v%d" % (D+dt*4, D+dt*4+1))
            k.e("v_cvt_pk_bf16_f32 v87, v%d, v%d" % (D+dt*4+2, D+dt*4+3))
            for q in range(2):
                k.e("v_lshlrev_b32 v88, 16, v%d" % (86+q))
                k.e("v_and_b32 v89, 0xffff0000, v%d" % (86+q))
                k.e("v_mul_f32 v88, v88, v84")
                k.e("v_mul_f32 v89, v89, v84")
                k.e("v_cvt_pk_bf16_f32 v%d, v88, v89" % (90+q))
            if dt == 1:
                k.e("v_cmp_eq_u32 vcc, 0, v2")
                k.e("s_and_saveexec_b64 s[44:45], vcc")
            k.e("s_mov_b32 s35, %d" % (st*16*1280))
            k.e("buffer_store_dwordx2 v[90:91], v14, s[16:19], s35 offen offset:%d" % (dt*32))
            if dt == 1:
                k.e("s_mov_b64 exec, s[44:45]")
            k.e("s_nop 1")
    k.label(lend)
    return k

SB_STAGE = 128*160
SB_NST = 3
def gen_stream(name, ptrA, offA, rowA, ptrB, nk, ptrR, offR, out_ptr, out_off, nbB, nbA):
    k = K(name, nvgpr=160)
    lend = "L_%s_end" % name
    k.e("s_cmp_ge_u32 s2, 256")
    k.e("s_cbranch_scc1 %s" % lend)
    k.e("s_load_dwordx2 s[4:5], s[0:1], %d" % ptrB[0])
    k.e("s_load_dwordx2 s[6:7], s[0:1], %d" % ptrR[0])
    k.e("s_load_dwordx2 s[38:39], s[0:1], %d" % out_ptr)
    k.e("s_load_dwordx2 s[40:41], s[0:1], 72")
    k.e("s_lshr_b32 s28, s2, 3")
    k.e("s_and_b32 s29, s2, 7")
    lane_ids(k)
    k.e("s_waitcnt lgkmcnt(0)")
    srd(k, 8, 40, nbA, offA)
    srd(k, 12, 4, nbB)
    srd(k, 16, 6, SZ_X, offR)
    srd(k, 20, 38, SZ_X, out_off)
    k.e("s_mul_i32 s33, s30, 320")
    k.e("s_mul_i32 s34, s29, 160")
    k.e("s_mul_i32 s35, s30, 5120")
    for i in range(5):
        k.e("v_add_u32 v12, s33, v1")
        if i: k.e("v_add_u32 v12, %d, v12" % (64*i))
        k.e("v_mul_u32_u24 v13, 6554, v12"); k.e("v_lshrrev_b32 v13, 16, v13")
        k.e("v_mul_u32_u24 v14, 10, v13"); k.e("v_sub_u32 v14, v12, v14")
        k.e("v_mul_u32_u24 v%d, 1280, v13" % (4+i))
        k.e("v_lshl_add_u32 v%d, v14, 4, v%d" % (4+i, 4+i))
        k.e("v_add_u32 v%d, s34, v%d" % (4+i, 4+i))
    nst = (nk + 3)//4
    def dma(st):
        k.e("s_mov_b32 s36, 0x%x" % (st*128*1280))
        k.e("s_add_u32 s37, s35, %d" % ((st % SB_NST)*SB_STAGE))
        for i in range(5):
            k.e("s_mov_b32 m0, s37")
            k.e("s_nop 0")
            k.vm("buffer_load_dwordx4 v%d, s[12:15], s36 offen lds" % (4+i), "dma%d" % st)
            if i < 4: k.e("s_add_u32 s37, s37, 1024")
    k.e("s_lshl_b32 s33, s28, 6"); k.e("s_lshl_b32 s34, s30, 4"); k.e("s_add_u32 s33, s33, s34")
    k.e("v_add_u32 v9, s33, v3")
    k.e("v_mul_u32_u24 v10, %d, v9" % rowA)
    k.e("v_lshl_add_u32 v10, v2, 3, v10")
    PD = 8
    AR = 96
    def aload(kk):
        r = AR + (kk % PD)*4
        k.vm("buffer_load_dwordx2 v[%d:%d], v10, s[8:11], 0 offen offset:%d" % (r, r+1, kk*64), "a%d" % kk)
        k.vm("buffer_load_dwordx2 v[%d:%d], v10, s[8:11], 0 offen offset:%d" % (r+2, r+3, kk*64+32), "a%d" % kk)
    for st in range(min(SB_NST, nst)):
        dma(st)
    for kk in range(min(PD, nk)):
        aload(kk)
    k.e("v_mul_u32_u24 v11, 1280, v9")
    k.e("s_mul_i32 s34, s29, 160")
    k.e("v_lshl_add_u32 v11, v2, 3, v11")
    k.e("v_add_u32 v11, s34, v11")
    RES = 128
    for t in range(5):
        k.vm("buffer_load_dwordx2 v[%d:%d], v11, s[16:19], 0 offen offset:%d" % (RES+2*t, RES+2*t+1, t*32), "res")
    k.e("v_lshrrev_b32 v12, 2, v3")
    k.e("v_lshl_add_u32 v12, v2, 2, v12")
    k.e("v_mul_u32_u24 v12, 160, v12")
    k.e("v_and_b32 v13, 3, v3")
    k.e("v_lshl_add_u32 v12, v13, 3, v12")
    ACC = 16
    BF = 40
    for r in range(20): k.e("v_mov_b32 v%d, 0" % (ACC+r))
    def reads(kk):
        b = kk & 1
        off = ((kk//4) % SB_NST)*SB_STAGE + (kk % 4)*32*160
        for t in range(5):
            r = BF + b*20 + t*4
            k.lg("ds_read_b64_tr_b16 v[%d:%d], v12 offset:%d" % (r, r+1, off + t*32))
            k.lg("ds_read_b64_tr_b16 v[%d:%d], v12 offset:%d" % (r+2, r+3, off + t*32 + 16*160))
    k.wait_vm("dma0")
    k.e("s_barrier")
    reads(0)
    for kk in range(nk):
        k.e("s_waitcnt lgkmcnt(0)"); k.lg_q = []
        if kk + 1 < nk:
            if (kk+1) % 4 == 0:
                st = (kk+1)//4
                k.wait_vm("dma%d" % st)
                k.e("s_barrier")
                if st + SB_NST - 1 < nst:
                    dma(st + SB_NST - 1)
            reads(kk+1)
        k.wait_vm("a%d" % kk)
        b = kk & 1
        ar = AR + (kk % PD)*4
        for t in range(5):
            a = ACC + t*4
            k.e("v_mfma_f32_16x16x32_bf16 v[%d:%d], v[%d:%d], v[%d:%d], v[%d:%d]" %
                (a, a+3, BF+b*20+t*4, BF+b*20+t*4+3, ar, ar+3, a, a+3))
        if kk + PD < nk:
            aload(kk + PD)
    k.wait_vm("res")
    k.e("s_nop 7"); k.e("s_nop 7")
    for t in range(5):
        a = ACC + t*4
        k.e("v_cvt_pk_bf16_f32 v80, v%d, v%d" % (a, a+1))
        k.e("v_cvt_pk_bf16_f32 v81, v%d, v%d" % (a+2, a+3))
        for q in range(2):
            k.e("v_lshlrev_b32 v82, 16, v%d" % (80+q))
            k.e("v_and_b32 v83, 0xffff0000, v%d" % (80+q))
            k.e("v_lshlrev_b32 v84, 16, v%d" % (RES+2*t+q))
            k.e("v_and_b32 v85, 0xffff0000, v%d" % (RES+2*t+q))
            k.e("v_pk_add_f32 v[82:83], v[82:83], v[84:85]")
            k.e("v_cvt_pk_bf16_f32 v%d, v82, v83" % (86+q))
        k.e("buffer_store_dwordx2 v[86:87], v11, s[20:23], 0 offen offset:%d" % (t*32))
        k.e("s_nop 1")
    k.label(lend)
    return k

def gen_k3():
    k = K("hh_k3_kernel", nvgpr=256)
    lend = "L_k3_end"
    k.e("s_cmp_ge_u32 s2, 256")
    k.e("s_cbranch_scc1 %s" % lend)
    k.e("s_load_dwordx2 s[6:7], s[0:1], 40")
    k.e("s_load_dwordx2 s[40:41], s[0:1], 72")
    k.e("s_lshr_b32 s28, s2, 3")
    k.e("s_and_b32 s29, s2, 7")
    lane_ids(k)
    k.e("s_waitcnt lgkmcnt(0)")
    srd(k, 8, 40, SZ_X, WS_H)
    srd(k, 16, 6, 640*1728*2)
    srd(k, 20, 40, SZ_H1, WS_H1)
    k.e("s_lshl_b32 s42, s28, 6")
    ln_prologue(k, 8, "s42")
    k.e("s_mul_i32 s35, s30, 1920")
    k.e("s_mul_i32 s33, s30, 120")
    k.e("s_mul_i32 s34, s29, 432")
    k.e("s_mov_b32 s36, -1"); k.e("s_mov_b32 s37, 0x00ffffff")
    for vi, add in ((8, 0), (9, 64)):
        k.e("v_add_u32 v12, s33, v1")
        if add: k.e("v_add_u32 v12, %d, v12" % add)
        k.e("v_mul_u32_u24 v13, 2185, v12"); k.e("v_lshrrev_b32 v13, 16, v13")
        k.e("v_mul_u32_u24 v14, 30, v13"); k.e("v_sub_u32 v14, v12, v14")
        k.e("v_mul_u32_u24 v%d, 3456, v13" % vi)
        k.e("v_lshl_add_u32 v%d, v14, 4, v%d" % (vi, vi))
        k.e("v_add_u32 v%d, s34, v%d" % (vi, vi))
    dma, reads, ACC, AF, BF = main_loop_Ares(k, 16)
    ln_compute(k)
    frag_addr_setup(k)
    run_main_loop(k, dma, reads, ACC, AF, BF)
    k.c("---- epilogue: silu, store")
    k.e("s_lshl_b32 s33, s31, 5"); k.e("s_add_u32 s33, s33, s42")
    k.e("v_add_u32 v12, s33, v3")
    k.e("v_mul_u32_u24 v12, 3456, v12")
    k.e("v_lshl_add_u32 v12, v2, 3, v12")
    k.e("s_mul_i32 s34, s29, 432")
    k.e("s_lshl_b32 s33, s32, 7"); k.e("s_add_u32 s33, s33, s34")
    k.e("v_add_u32 v12, s33, v12")
    k.e("s_lshl_b32 s33, s32, 6")
    k.e("v_lshl_add_u32 v13, v2, 2, s33")
    k.e("s_mov_b32 s47, 0x%x" % LOG2E)
    for t in range(4):
        k.e("v_add_u32 v14, %d, v13" % (16*t))
        k.e("v_cmp_gt_u32 vcc, 216, v14")
        k.e("s_and_saveexec_b64 s[44:45], vcc")
        for mt in range(2):
            a = ACC + (mt*4 + t)*4
            k.e("v_cvt_pk_bf16_f32 v16, v%d, v%d" % (a, a+1))
            k.e("v_cvt_pk_bf16_f32 v17, v%d, v%d" % (a+2, a+3))
            for q in range(2):
                k.e("v_lshlrev_b32 v18, 16, v%d" % (16+q))
                k.e("v_and_b32 v19, 0xffff0000, v%d" % (16+q))
                k.e("v_mul_f32 v20, s47, v18"); k.e("v_mul_f32 v21, s47, v19")
                k.e("v_exp_f32 v20, -v20"); k.e("v_exp_f32 v21, -v21")
                k.e("s_nop 0")
                k.e("v_add_f32 v20, 1.0, v20"); k.e("v_add_f32 v21, 1.0, v21")
                k.e("v_rcp_f32 v20, v20"); k.e("v_rcp_f32 v21, v21")
                k.e("s_nop 0")
                k.e("v_mul_f32 v18, v18, v20"); k.e("v_mul_f32 v19, v19, v21")
                k.e("v_cvt_pk_bf16_f32 v%d, v18, v19" % (22+q))
            k.e("s_mov_b32 s35, %d" % (mt*16*3456))
            k.e("buffer_store_dwordx2 v[22:23], v12, s[20:23], s35 offen offset:%d" % (t*32))
            k.e("s_nop 1")
        k.e("s_mov_b64 exec, s[44:45]")
    k.label(lend)
    return k

HEADER = """Kernarg layout for this problem (80 bytes, ptrs only, base s[0:1]):
  offset   0: d_in[0] A_x (1,2048,640) bf16 ; 8: A_wqkv (640,1920) ; 16: A_w_phi (32,20,20) ; 24: A_wo (640,640)
  offset  32: B_x (unused by the reference) ; 40: B_w1 (640,1728) ; 48: B_w2 (1728,640) ; 56: d_out ; 64: d_debug ; 72: d_ws
Pipeline (generated by my own scripts): K1 LN1+QKV+hedgehog features+partial kv ; KR kv reduce + o ;
K2 h = x + o@wo ; K3 h1 = silu(LN(h)@w1) ; K4 out = h + h1@w2""".split("\n")

def build(path):
    k1 = gen_k1(); kr = gen_kr(); k3 = gen_k3()
    k2 = gen_stream("hh_k2_kernel", None, WS_O, 1280, (24,), 20, (0,), 0, 72, WS_H, 640*640*2, SZ_X)
    k4 = gen_stream("hh_k4_kernel", None, WS_H1, 3456, (48,), 54, (72,), WS_H, 56, 0, 1728*640*2, SZ_H1)
    txt = build_file(HEADER, [(k1, (256,1,1), (512,1,1), K1_LDS),
                              (kr, (256,1,1), (256,1,1), 5120),
                              (k2, (256,1,1), (256,1,1), SB_NST*SB_STAGE),
                              (k3, (256,1,1), (512,1,1), B_BASE + NSTAGE*B_STAGE),
                              (k4, (256,1,1), (256,1,1), SB_NST*SB_STAGE)])
    open(path, "w").write(txt)
    return txt

if __name__ == "__main__":
    t = build("full.s")
    print("lines", t.count("\n"), "bytes", len(t))
```

```python
class K:
    def __init__(self, name, nvgpr=256, nsgpr=102, lds=0):
        self.name = name
        self.lines = []
        self.nvgpr = nvgpr
        self.nsgpr = nsgpr
        self.vm_q = []
        self.lg_q = []
        self.lab = 0
    def e(self, s):
        if s.startswith("buffer_") and "offset:" in s:
            import re
            assert int(re.search(r"offset:(\d+)", s).group(1)) <= 4095, s
        if s.startswith("ds_") and "offset:" in s:
            import re
            assert int(re.search(r"offset:(\d+)", s).group(1)) <= 65535, s
        self.lines.append("    " + s)
    def c(self, s):
        self.lines.append("    ; " + s)
    def label(self, l):
        self.lines.append(l + ":")
    def newlabel(self, base="L"):
        self.lab += 1
        return "%s_%s_%d" % (base, self.name, self.lab)
    def vm(self, instr, tag=None):
        self.e(instr)
        self.vm_q.append(tag)
    def wait_vm(self, tag=None, all=False):
        if all or tag is None:
            n = 0
            self.vm_q = []
        else:
            idxs = [i for i, t in enumerate(self.vm_q) if t == tag]
            if not idxs:
                return
            idx = max(idxs)
            n = len(self.vm_q) - 1 - idx
            self.vm_q = self.vm_q[idx + 1:]
        assert n <= 63
        self.e("s_waitcnt vmcnt(%d)" % n)
    def lg(self, instr, tag=None):
        self.e(instr)
        self.lg_q.append(tag)
    def wait_lg(self, tag=None):
        if tag is None:
            n = 0
            self.lg_q = []
        else:
            idx = max(i for i, t in enumerate(self.lg_q) if t == tag)
            n = len(self.lg_q) - 1 - idx
            self.lg_q = self.lg_q[idx + 1:]
        assert n <= 15
        self.e("s_waitcnt lgkmcnt(%d)" % n)
    def stamp_init(self):
        if not getattr(self, "diag", False): return
        self.e("s_load_dwordx2 s[94:95], s[0:1], 64")
        self.e("s_waitcnt lgkmcnt(0)")
        self.e("s_mov_b32 s88, s94"); self.e("s_mov_b32 s89, s95")
        self.e("s_mov_b32 s90, 256"); self.e("s_mov_b32 s91, 0x00020000")
    def stamp(self, i):
        if not getattr(self, "diag", False): return
        l = self.newlabel("L_stamp")
        self.e("s_memtime s[96:97]")
        self.e("s_cmp_lg_u32 s2, %d" % getattr(self, "diag_wg", 0))
        self.e("s_cbranch_scc1 %s" % l)
        self.e("s_waitcnt lgkmcnt(0)")
        self.e("v_mov_b32 v250, s96"); self.e("v_mov_b32 v251, s97")
        self.e("v_mov_b32 v252, %d" % (8*i))
        self.e("v_cmp_eq_u32 vcc, 0, v0")
        self.e("s_and_saveexec_b64 s[98:99], vcc")
        self.e("buffer_store_dwordx2 v[250:251], v252, s[88:91], 0 offen")
        self.e("s_mov_b64 exec, s[98:99]")
        self.label(l)
        self.e("s_waitcnt lgkmcnt(0)")
    def text(self):
        nm = self.name
        out = [".text", ".globl %s" % nm, ".p2align 8", ".type %s,@function" % nm, "%s:" % nm]
        out += self.lines
        out.append("    s_endpgm")
        return "\n".join(out) + "\n"
    def desc(self):
        acc = min(256, (self.nvgpr + 3) // 4 * 4)
        return """.amdhsa_kernel %s
  .amdhsa_next_free_vgpr %d
  .amdhsa_next_free_sgpr %d
  .amdhsa_accum_offset %d
  .amdhsa_group_segment_fixed_size 0
  .amdhsa_kernarg_size 80
  .amdhsa_user_sgpr_count 2
  .amdhsa_user_sgpr_kernarg_segment_ptr 1
  .amdhsa_system_sgpr_workgroup_id_x 1
.end_amdhsa_kernel
""" % (nm_fix(self.name), self.nvgpr, self.nsgpr, acc)

def nm_fix(n):
    return n

def build_file(header_lines, kernels):
    s = []
    for h in header_lines:
        s.append("; " + h)
    for (k, grid, block, lds) in kernels:
        s.append("; @launch kernel=%s grid=(%d,%d,%d) block=(%d,%d,%d) lds=%d" % ((k.name,) + tuple(grid) + tuple(block) + (lds,)))
    s.append('.amdgcn_target "amdgcn-amd-amdhsa--gfx950"')
    seen = set()
    for (k, grid, block, lds) in kernels:
        if k.name in seen: continue
        seen.add(k.name)
        s.append(k.text())
    s.append('.section .rodata,"a"')
    seen = set()
    for (k, grid, block, lds) in kernels:
        if k.name in seen: continue
        seen.add(k.name)
        s.append(".p2align 6")
        s.append(k.desc())
    return "\n".join(s)

def srd(k, sreg, ptr_lo, nbytes, off=0):
    if off:
        k.e("s_add_u32 s%d, s%d, 0x%x" % (sreg, ptr_lo, off))
        k.e("s_addc_u32 s%d, s%d, 0" % (sreg + 1, ptr_lo + 1))
    else:
        k.e("s_mov_b32 s%d, s%d" % (sreg, ptr_lo))
        k.e("s_mov_b32 s%d, s%d" % (sreg + 1, ptr_lo + 1))
    k.e("s_mov_b32 s%d, 0x%x" % (sreg + 2, nbytes))
    k.e("s_mov_b32 s%d, 0x00020000" % (sreg + 3))
```

```python
from asmgen import *
import sys

NAME = "sequential_preLN__linear_kernel_hedgehog__dense_activation_silu__prompt"
WS_PHIQ = 0
WS_KVP  = 0x600000
WS_O    = 0xA00000
WS_H    = 0xD00000
WS_H1   = 0x1000000
SZ_X    = 2048*640*2
SZ_PHIQ = 2048*32*40*2
SZ_KVP  = 32*32*840*4
SZ_H1   = 2048*1728*2

A_STRIDE = 1312
A_BYTES  = 64*A_STRIDE
B_STAGE  = 32*480
NSTAGE   = 4
B_BASE   = A_BYTES
WP_BASE  = B_BASE + NSTAGE*B_STAGE
K1_LDS   = WP_BASE + 8192
T_BASE   = 0
T_STRIDE = 496
P_BASE   = 32768
PHIK_BASE = 73728

LOG2E = 0x3fb8aa3b

def lane_ids(k):
    k.e("v_and_b32 v1, 63, v0")
    k.e("v_lshrrev_b32 v2, 4, v1")
    k.e("v_and_b32 v3, 15, v1")
    k.e("v_lshrrev_b32 v4, 6, v0")
    k.e("s_nop 0")
    k.e("v_readfirstlane_b32 s30, v4")

def ln_prologue(k, srd_x, s_row0):
    k.c("---- LN prologue: loads")
    k.e("v_lshrrev_b32 v5, 3, v0")
    k.e("v_and_b32 v6, 7, v0")
    k.e("v_add_u32 v7, %s, v5" % s_row0)
    k.e("v_mul_u32_u24 v7, 1280, v7")
    k.e("v_lshl_add_u32 v7, v6, 4, v7")
    for j in range(10):
        k.vm("buffer_load_dwordx4 v[%d:%d], v7, s[%d:%d], 0 offen offset:%d" % (16+4*j, 19+4*j, srd_x, srd_x+3, j*128), "x")

def ln_compute(k, dma=None):
    k.c("---- LN compute")
    k.wait_vm("x")
    k.stamp(8)
    if dma:
        for i in range(NSTAGE):
            dma(i)
    U = 160
    k.e("v_mov_b32 v56, 0x3f803f80")
    for a in range(4): k.e("v_mov_b32 v%d, 0" % (57+a))
    for r in range(40):
        k.e("v_dot2_f32_bf16 v%d, v%d, v56, v%d" % (57 + (r & 3), 16+r, 57 + (r & 3)))
        k.e("v_lshlrev_b32 v%d, 16, v%d" % (U+2*r, 16+r))
        k.e("v_and_b32 v%d, 0xffff0000, v%d" % (U+2*r+1, 16+r))
    k.e("v_add_f32 v57, v57, v58"); k.e("v_add_f32 v59, v59, v60")
    k.e("v_add_f32 v57, v57, v59")
    def red8(v):
        k.e("s_nop 1")
        k.e("v_add_f32_dpp v61, %s, %s quad_perm:[1,0,3,2] row_mask:0xf bank_mask:0xf" % (v, v))
        k.e("s_nop 1")
        k.e("v_add_f32_dpp %s, v61, v61 quad_perm:[2,3,0,1] row_mask:0xf bank_mask:0xf" % v)
        k.e("s_nop 1")
        k.e("v_add_f32_dpp v61, %s, %s row_half_mirror row_mask:0xf bank_mask:0xf" % (v, v))
        k.e("v_mov_b32 %s, v61" % v)
    red8("v57")
    k.e("v_mul_f32 v57, 0x3acccccd, v57")
    k.e("v_mov_b32 v62, v57"); k.e("v_mov_b32 v63, v57")
    for a in range(8): k.e("v_mov_b32 v%d, 0" % (64+a))
    for r in range(40):
        t = 72 + 2*(r & 3); c = 64 + 2*(r & 3)
        k.e("v_pk_add_f32 v[%d:%d], v[%d:%d], v[62:63] neg_lo:[0,1] neg_hi:[0,1]" % (t, t+1, U+2*r, U+2*r+1))
        k.e("v_pk_fma_f32 v[%d:%d], v[%d:%d], v[%d:%d], v[%d:%d]" % (c, c+1, t, t+1, t, t+1, c, c+1))
    k.e("v_pk_add_f32 v[64:65], v[64:65], v[66:67]"); k.e("v_pk_add_f32 v[68:69], v[68:69], v[70:71]")
    k.e("v_pk_add_f32 v[64:65], v[64:65], v[68:69]")
    k.e("v_add_f32 v60, v64, v65")
    red8("v60")
    k.e("v_mul_f32 v60, 0x3acccccd, v60")
    k.e("v_cvt_pk_bf16_f32 v61, v57, v60")
    k.e("v_lshlrev_b32 v62, 16, v61")
    k.e("v_and_b32 v63, 0xffff0000, v61")
    k.e("v_add_f32 v63, 0x3727c5ac, v63")
    k.e("v_cvt_pk_bf16_f32 v63, v63, v63")
    k.e("v_and_b32 v63, 0xffff0000, v63")
    k.e("v_sqrt_f32 v63, v63")
    k.e("s_nop 0")
    k.e("v_cvt_pk_bf16_f32 v63, v63, v63")
    k.e("v_and_b32 v63, 0xffff0000, v63")
    k.e("v_rcp_f32 v66, v63")
    k.e("s_nop 0")
    k.e("v_mov_b32 v67, v66")
    k.e("v_mov_b32 v63, v62")
    k.e("v_mul_u32_u24 v68, %d, v5" % A_STRIDE)
    k.e("v_lshrrev_b32 v69, 2, v6")
    k.e("v_lshl_add_u32 v68, v69, 6, v68")
    k.e("v_and_b32 v69, 1, v6")
    k.e("v_lshl_add_u32 v68, v69, 5, v68")
    k.e("v_bfe_u32 v69, v6, 1, 1")
    k.e("v_lshl_add_u32 v68, v69, 3, v68")
    for j in range(10):
        T = 72; C = 80; O = 84
        for d in range(4):
            r = 4*j + d
            k.e("v_pk_add_f32 v[%d:%d], v[%d:%d], v[62:63] neg_lo:[0,1] neg_hi:[0,1]" % (T+2*d, T+2*d+1, U+2*r, U+2*r+1))
        for d in range(4):
            k.e("v_cvt_pk_bf16_f32 v%d, v%d, v%d" % (C+d, T+2*d, T+2*d+1))
        for d in range(4):
            k.e("v_lshlrev_b32 v%d, 16, v%d" % (T+2*d, C+d))
            k.e("v_and_b32 v%d, 0xffff0000, v%d" % (T+2*d+1, C+d))
        for d in range(4):
            k.e("v_pk_mul_f32 v[%d:%d], v[%d:%d], v[66:67]" % (T+2*d, T+2*d+1, T+2*d, T+2*d+1))
        for d in range(4):
            k.e("v_cvt_pk_bf16_f32 v%d, v%d, v%d" % (O+d, T+2*d, T+2*d+1))
        k.lg("ds_write_b64 v68, v[%d:%d] offset:%d" % (O, O+1, j*128))
        k.lg("ds_write_b64 v68, v[%d:%d] offset:%d" % (O+2, O+3, j*128 + 16))

def dma_setup_240(k, col_expr_setup):
    pass

def main_loop_Ares(k, srd_w, nk=20):
    ACC = 96; AF = 128; BF = 144
    def dma(st):
        k.e("s_mov_b32 s33, 0x%x" % (st*32*3840) if srd_w == 12 else "s_mov_b32 s33, 0x%x" % (st*32*3456))
        base = B_BASE + (st % NSTAGE)*B_STAGE
        k.e("s_add_u32 s34, s35, 0x%x" % base)
        k.e("s_mov_b32 m0, s34")
        k.e("s_nop 0")
        k.vm("buffer_load_dwordx4 v8, s[%d:%d], s33 offen lds" % (srd_w, srd_w+3), "dma%d" % st)
        k.e("s_add_u32 s34, s34, 1024")
        k.e("s_mov_b32 m0, s34")
        k.e("s_mov_b64 exec, s[36:37]")
        k.vm("buffer_load_dwordx4 v9, s[%d:%d], s33 offen lds" % (srd_w, srd_w+3), "dma%d" % st)
        k.e("s_mov_b64 exec, -1")
    def reads(kk):
        b = kk & 1
        for mt in range(2):
            k.lg("ds_read_b128 v[%d:%d], v10 offset:%d" % (AF+b*8+mt*4, AF+b*8+mt*4+3, kk*64 + mt*16*A_STRIDE))
        sb = (kk % NSTAGE)*B_STAGE
        for t in range(4):
            r = BF + b*16 + t*4
            k.lg("ds_read_b64_tr_b16 v[%d:%d], v11 offset:%d" % (r, r+1, sb + t*32))
            k.lg("ds_read_b64_tr_b16 v[%d:%d], v11 offset:%d" % (r+2, r+3, sb + t*32 + 16*480))
    return dma, reads, ACC, AF, BF

def run_main_loop(k, dma, reads, ACC, AF, BF, nk=20):
    k.c("---- main loop")
    for r in range(32):
        k.e("v_mov_b32 v%d, 0" % (ACC + r))
    k.wait_vm("dma0")
    k.e("s_waitcnt lgkmcnt(0)"); k.lg_q = []
    k.e("s_barrier")
    reads(0)
    for kk in range(nk):
        k.e("s_waitcnt lgkmcnt(0)"); k.lg_q = []
        if kk + 1 < nk:
            k.wait_vm("dma%d" % (kk+1))
        k.e("s_barrier")
        if kk + NSTAGE < nk:
            dma(kk + NSTAGE)
        if kk + 1 < nk:
            reads(kk + 1)
        b = kk & 1
        for mt in range(2):
            for t in range(4):
                a = ACC + (mt*4 + t)*4
                k.e("v_mfma_f32_16x16x32_bf16 v[%d:%d], v[%d:%d], v[%d:%d], v[%d:%d]" %
                    (a, a+3, BF+b*16+t*4, BF+b*16+t*4+3, AF+b*8+mt*4, AF+b*8+mt*4+3, a, a+3))
    k.e("s_nop 7"); k.e("s_nop 7")

def frag_addr_setup(k):
    k.e("s_and_b32 s31, s30, 1")
    k.e("s_lshr_b32 s32, s30, 1")
    k.e("s_mul_i32 s33, s31, %d" % (32*A_STRIDE))
    k.e("v_mul_u32_u24 v10, %d, v3" % A_STRIDE)
    k.e("v_lshl_add_u32 v10, v2, 4, v10")
    k.e("v_add_u32 v10, s33, v10")
    k.e("v_lshrrev_b32 v11, 2, v3")
    k.e("v_lshl_add_u32 v11, v2, 2, v11")
    k.e("v_mul_u32_u24 v11, 480, v11")
    k.e("v_and_b32 v12, 3, v3")
    k.e("v_lshl_add_u32 v11, v12, 3, v11")
    k.e("s_lshl_b32 s33, s32, 7")
    k.e("s_add_u32 s33, s33, %d" % B_BASE)
    k.e("v_add_u32 v11, s33, v11")

DIAG = False
def gen_k1():
    k = K("hh_k1_kernel", nvgpr=256)
    k.diag = DIAG
    k.stamp_init()
    k.stamp(0)
    k.e("s_cmp_ge_u32 s2, 256")
    lend = "L_k1_end"
    k.e("s_cbranch_scc1 %s" % lend)
    k.e("s_load_dwordx4 s[4:7], s[0:1], 0")
    k.e("s_load_dwordx2 s[38:39], s[0:1], 16")
    k.e("s_load_dwordx2 s[40:41], s[0:1], 72")
    k.e("s_lshr_b32 s28, s2, 3")
    k.e("s_and_b32 s29, s2, 7")
    lane_ids(k)
    k.e("s_waitcnt lgkmcnt(0)")
    srd(k, 8, 4, SZ_X)
    srd(k, 12, 6, 640*1920*2)
    srd(k, 16, 38, 32*400*2)
    srd(k, 20, 40, SZ_PHIQ, WS_PHIQ)
    srd(k, 24, 40, SZ_KVP, WS_KVP)
    k.e("s_lshl_b32 s42, s28, 6")
    ln_prologue(k, 8, "s42")
    k.e("s_mul_i32 s35, s30, 1920")
    k.e("s_mul_i32 s33, s30, 120")
    k.e("s_mul_i32 s34, s29, 160")
    k.e("s_mov_b32 s36, -1"); k.e("s_mov_b32 s37, 0x00ffffff")
    for vi, add in ((8, 0), (9, 64)):
        k.e("v_add_u32 v12, s33, v1")
        if add: k.e("v_add_u32 v12, %d, v12" % add)
        k.e("v_mul_u32_u24 v13, 2185, v12"); k.e("v_lshrrev_b32 v13, 16, v13")
        k.e("v_mul_u32_u24 v14, 30, v13"); k.e("v_sub_u32 v14, v12, v14")
        k.e("v_mul_u32_u24 v15, 6554, v14"); k.e("v_lshrrev_b32 v15, 16, v15")
        k.e("v_mul_u32_u24 v%d, 3840, v13" % vi)
        k.e("v_mul_u32_u24 v13, 1280, v15"); k.e("v_add_u32 v%d, v%d, v13" % (vi, vi))
        k.e("v_mul_u32_u24 v15, 10, v15"); k.e("v_sub_u32 v14, v14, v15")
        k.e("v_lshl_add_u32 v%d, v14, 4, v%d" % (vi, vi))
        k.e("v_add_u32 v%d, s34, v%d" % (vi, vi))
    k.e("s_mul_i32 s33, s29, 3200")
    k.e("v_lshlrev_b32 v81, 3, v0")
    k.e("v_add_u32 v81, s33, v81")
    k.e("v_cmp_gt_u32 vcc, 400, v0")
    k.e("s_and_saveexec_b64 s[44:45], vcc")
    k.vm("buffer_load_dwordx2 v[240:241], v81, s[16:19], 0 offen", "wphi")
    k.e("s_mov_b64 exec, s[44:45]")
    dma, reads, ACC, AF, BF = main_loop_Ares(k, 12)
    k.e("v_mov_b32 v76, 0"); k.e("v_mov_b32 v77, 0"); k.e("v_mov_b32 v78, 0"); k.e("v_mov_b32 v79, 0")
    k.e("v_lshlrev_b32 v80, 4, v0")
    k.e("v_add_u32 v80, %d, v80" % WP_BASE)
    k.lg("ds_write_b128 v80, v[76:79]")
    k.stamp(1)
    ln_compute(k, dma)
    k.stamp(2)
    frag_addr_setup(k)
    k.e("v_mul_u32_u24 v84, 656, v0"); k.e("v_lshrrev_b32 v84, 16, v84")
    k.e("v_mul_u32_u24 v85, 100, v84"); k.e("v_sub_u32 v85, v0, v85")
    k.e("v_mul_u32_u24 v86, 13108, v85"); k.e("v_lshrrev_b32 v86, 16, v86")
    k.e("v_mul_u32_u24 v87, 5, v86"); k.e("v_sub_u32 v87, v85, v87")
    k.e("v_lshlrev_b32 v84, 11, v84")
    k.e("v_lshl_add_u32 v84, v86, 6, v84")
    k.e("v_lshl_add_u32 v84, v87, 3, v84")
    k.e("v_add_u32 v84, %d, v84" % WP_BASE)
    k.wait_vm("wphi")
    k.e("s_waitcnt lgkmcnt(0)"); k.lg_q = []
    k.e("s_barrier")
    k.e("v_cmp_gt_u32 vcc, 400, v0")
    k.e("s_and_saveexec_b64 s[44:45], vcc")
    k.lg("ds_write_b64 v84, v[240:241]")
    k.e("s_mov_b64 exec, s[44:45]")
    k.stamp(3)
    run_main_loop(k, dma, reads, ACC, AF, BF)
    k.stamp(4)
    k1_epilogue(k, ACC)
    k.stamp(9)
    k.label(lend)
    return k

def k1_epilogue(k, ACC):
    k.c("---- epilogue: q,k,v tile to LDS (bf16)")
    k.e("s_barrier")
    k.e("s_mul_i32 s33, s31, %d" % (32*T_STRIDE))
    k.e("s_lshl_b32 s34, s32, 7")
    k.e("s_add_u32 s33, s33, s34")
    k.e("v_mul_u32_u24 v12, %d, v3" % T_STRIDE)
    k.e("v_lshl_add_u32 v12, v2, 3, v12")
    k.e("v_add_u32 v12, s33, v12")
    skip = k.newlabel("L_skip_t3")
    for t in range(4):
        if t == 3:
            k.e("s_cmp_eq_u32 s32, 3")
            k.e("s_cbranch_scc1 %s" % skip)
        for mt in range(2):
            a = ACC + (mt*4 + t)*4
            k.e("v_cvt_pk_bf16_f32 v14, v%d, v%d" % (a, a+1))
            k.e("v_cvt_pk_bf16_f32 v15, v%d, v%d" % (a+2, a+3))
            k.lg("ds_write_b64 v12, v[14:15] offset:%d" % (T_BASE + mt*16*T_STRIDE + t*32))
    k.label(skip)
    k.e("s_waitcnt lgkmcnt(0)"); k.lg_q = []
    k.e("s_barrier")
    k.stamp(5)
    k.c("---- pq / pk : wave w -> head hh=w&3, which=w>>2")
    k.e("s_and_b32 s43, s30, 3")
    k.e("s_lshr_b32 s46, s30, 2")
    k.e("s_mul_i32 s33, s46, 160")
    k.e("s_mul_i32 s34, s43, 40")
    k.e("s_add_u32 s33, s33, s34")
    k.e("v_mul_u32_u24 v12, %d, v3" % T_STRIDE)
    k.e("v_lshl_add_u32 v12, v2, 3, v12")
    k.e("v_add_u32 v12, s33, v12")
    XF = 16
    for mt in range(4):
        k.lg("ds_read_b64 v[%d:%d], v12 offset:%d" % (XF+mt*4, XF+mt*4+1, T_BASE + mt*16*T_STRIDE))
        k.lg("ds_read_b64 v[%d:%d], v12 offset:%d" % (XF+mt*4+2, XF+mt*4+3, T_BASE + mt*16*T_STRIDE + 32))
    k.e("v_lshrrev_b32 v13, 2, v3")
    k.e("v_lshl_add_u32 v13, v2, 2, v13")
    k.e("v_lshlrev_b32 v13, 6, v13")
    k.e("v_and_b32 v14, 3, v3")
    k.e("v_lshl_add_u32 v13, v14, 3, v13")
    k.e("s_lshl_b32 s33, s43, 11")
    k.e("s_add_u32 s33, s33, %d" % WP_BASE)
    k.e("v_add_u32 v13, s33, v13")
    WF = 32
    for ft in range(2):
        k.lg("ds_read_b64_tr_b16 v[%d:%d], v13 offset:%d" % (WF+ft*4, WF+ft*4+1, ft*32))
        k.lg("ds_read_b64_tr_b16 v[%d:%d], v13 offset:%d" % (WF+ft*4+2, WF+ft*4+3, ft*32 + 16*64))
    PD = 40
    for r in range(32):
        k.e("v_mov_b32 v%d, 0" % (PD + r))
    k.e("s_waitcnt lgkmcnt(0)"); k.lg_q = []
    k.e("s_nop 1")
    for mt in range(4):
        for ft in range(2):
            a = PD + (mt*2 + ft)*4
            k.e("v_mfma_f32_16x16x32_bf16 v[%d:%d], v[%d:%d], v[%d:%d], v[%d:%d]" %
                (a, a+3, WF+ft*4, WF+ft*4+3, XF+mt*4, XF+mt*4+3, a, a+3))
    k.e("s_nop 7"); k.e("s_nop 7")
    k.e("s_mul_i32 s33, s30, 5120")
    k.e("s_add_u32 s33, s33, %d" % P_BASE)
    k.e("v_mul_u32_u24 v12, 80, v3")
    k.e("v_lshl_add_u32 v12, v2, 3, v12")
    k.e("v_add_u32 v12, s33, v12")
    for mt in range(4):
        for ft in range(2):
            a = PD + (mt*2 + ft)*4
            k.e("v_cvt_pk_bf16_f32 v14, v%d, v%d" % (a, a+1))
            k.e("v_cvt_pk_bf16_f32 v15, v%d, v%d" % (a+2, a+3))
            k.lg("ds_write_b64 v12, v[14:15] offset:%d" % (mt*16*80 + ft*32))
    k.e("s_waitcnt lgkmcnt(0)"); k.lg_q = []
    k.stamp(6)
    k.c("---- dual softmax: lane = row")
    k.e("v_mul_u32_u24 v12, 80, v1")
    k.e("v_add_u32 v12, s33, v12")
    PV = 16
    for j in range(5):
        k.lg("ds_read_b64 v[%d:%d], v12 offset:%d" % (PV+2*j, PV+2*j+1, 8*j))
    k.e("s_waitcnt lgkmcnt(0)"); k.lg_q = []
    U = 28
    for j in range(10):
        k.e("v_lshlrev_b32 v%d, 16, v%d" % (U+2*j, PV+j))
        k.e("v_and_b32 v%d, 0xffff0000, v%d" % (U+2*j+1, PV+j))
    k.e("v_max3_f32 v48, v%d, v%d, v%d" % (U, U+1, U+2))
    k.e("v_min3_f32 v49, v%d, v%d, v%d" % (U, U+1, U+2))
    for j in range(3, 19, 2):
        k.e("v_max3_f32 v48, v48, v%d, v%d" % (U+j, U+j+1))
        k.e("v_min3_f32 v49, v49, v%d, v%d" % (U+j, U+j+1))
    k.e("v_max_f32 v48, v48, v%d" % (U+19))
    k.e("v_min_f32 v49, v49, v%d" % (U+19))
    k.e("s_mov_b32 s47, 0x%x" % LOG2E)
    k.e("v_mul_f32 v50, s47, v48")
    k.e("v_mul_f32 v51, s47, v49")
    EP = 52; EN = 72
    for j in range(20):
        k.e("v_fma_f32 v%d, v%d, s47, -v50" % (EP+j, U+j))
        k.e("v_fma_f32 v%d, -v%d, s47, v51" % (EN+j, U+j))
    for j in range(20):
        k.e("v_exp_f32 v%d, v%d" % (EP+j, EP+j))
        k.e("v_exp_f32 v%d, v%d" % (EN+j, EN+j))
    k.e("s_nop 0")
    k.e("v_add_f32 v92, v%d, v%d" % (EP, EP+1))
    k.e("v_add_f32 v93, v%d, v%d" % (EN, EN+1))
    for j in range(2, 20):
        k.e("v_add_f32 v92, v92, v%d" % (EP+j))
        k.e("v_add_f32 v93, v93, v%d" % (EN+j))
    k.e("v_rcp_f32 v92, v92")
    k.e("v_rcp_f32 v93, v93")
    k.e("s_nop 0")
    PH = 16
    for j in range(10):
        k.e("v_mul_f32 v94, v%d, v92" % (EP+2*j))
        k.e("v_mul_f32 v95, v%d, v92" % (EP+2*j+1))
        k.e("v_cvt_pk_bf16_f32 v%d, v94, v95" % (PH+j))
    for j in range(10):
        k.e("v_mul_f32 v94, v%d, v93" % (EN+2*j))
        k.e("v_mul_f32 v95, v%d, v93" % (EN+2*j+1))
        k.e("v_cvt_pk_bf16_f32 v%d, v94, v95" % (PH+10+j))
    lk = k.newlabel("L_phik"); ldone = k.newlabel("L_phidone")
    k.e("s_cmp_eq_u32 s46, 1")
    k.e("s_cbranch_scc1 %s" % lk)
    k.e("s_lshl_b32 s33, s29, 2"); k.e("s_add_u32 s33, s33, s43")
    k.e("s_mul_i32 s33, s33, 80")
    k.e("v_add_u32 v12, s42, v1")
    k.e("v_mul_u32_u24 v12, 2560, v12")
    k.e("v_add_u32 v12, s33, v12")
    for j in range(5):
        k.vm("buffer_store_dwordx4 v[%d:%d], v12, s[20:23], 0 offen offset:%d" % (PH+4*j, PH+4*j+3, 16*j), "st")
    k.e("s_branch %s" % ldone)
    k.label(lk)
    k.e("s_mul_i32 s33, s43, 6144")
    k.e("s_add_u32 s33, s33, %d" % PHIK_BASE)
    k.e("v_mul_u32_u24 v12, 96, v1")
    k.e("v_add_u32 v12, s33, v12")
    for j in range(5):
        k.e("ds_write_b128 v12, v[%d:%d] offset:%d" % (PH+4*j, PH+4*j+3, 16*j))
    k.label(ldone)
    k.e("s_waitcnt lgkmcnt(0)")
    k.e("s_barrier")
    k.stamp(7)
    k.c("---- partial kv = phi_k^T [v | 1] for head hh = wave (waves 0..3)")
    lfin = k.newlabel("L_kv_skip")
    k.e("s_cmp_ge_u32 s30, 4")
    k.e("s_cbranch_scc1 %s" % lfin)
    k.e("v_lshrrev_b32 v13, 2, v3")
    k.e("v_lshl_add_u32 v13, v2, 2, v13")
    k.e("v_and_b32 v14, 3, v3")
    k.e("v_mul_u32_u24 v15, 96, v13")
    k.e("v_lshl_add_u32 v15, v14, 3, v15")
    k.e("s_mul_i32 s33, s30, 6144")
    k.e("s_add_u32 s33, s33, %d" % PHIK_BASE)
    k.e("v_add_u32 v15, s33, v15")
    k.e("v_mul_u32_u24 v16, %d, v13" % T_STRIDE)
    k.e("v_lshl_add_u32 v16, v14, 3, v16")
    k.e("s_mul_i32 s33, s30, 40")
    k.e("s_add_u32 s33, s33, %d" % (T_BASE + 320))
    k.e("v_add_u32 v16, s33, v16")
    KF = 20
    VF = 44
    KD = 60
    for ks in range(2):
        for mt in range(3):
            r = KF + (ks*3+mt)*4
            k.e("ds_read_b64_tr_b16 v[%d:%d], v15 offset:%d" % (r, r+1, ks*32*96 + mt*32))
            k.e("ds_read_b64_tr_b16 v[%d:%d], v15 offset:%d" % (r+2, r+3, ks*32*96 + mt*32 + 16*96))
        for nt in range(2):
            r = VF + (ks*2+nt)*4
            k.e("ds_read_b64_tr_b16 v[%d:%d], v16 offset:%d" % (r, r+1, ks*32*T_STRIDE + nt*32))
            k.e("ds_read_b64_tr_b16 v[%d:%d], v16 offset:%d" % (r+2, r+3, ks*32*T_STRIDE + nt*32 + 16*T_STRIDE))
    for r in range(24):
        k.e("v_mov_b32 v%d, 0" % (KD + r))
    k.e("v_mov_b32 v17, 0x3f803f80")
    k.e("v_cmp_eq_u32 vcc, 4, v3")
    k.e("s_waitcnt lgkmcnt(0)")
    for ks in range(2):
        r = VF + (ks*2+1)*4
        for q in range(4):
            k.e("v_cndmask_b32 v%d, v%d, v17, vcc" % (r+q, r+q))
    k.e("s_nop 1")
    for ks in range(2):
        for mt in range(3):
            for nt in range(2):
                a = KD + (mt*2+nt)*4
                kf = KF + (ks*3+mt)*4; vf = VF + (ks*2+nt)*4
                k.e("v_mfma_f32_16x16x32_bf16 v[%d:%d], v[%d:%d], v[%d:%d], v[%d:%d]" %
                    (a, a+3, kf, kf+3, vf, vf+3, a, a+3))
    k.e("s_nop 7"); k.e("s_nop 7")
    k.e("s_lshl_b32 s33, s28, 5")
    k.e("s_lshl_b32 s34, s29, 2")
    k.e("s_add_u32 s33, s33, s34")
    k.e("s_add_u32 s33, s33, s30")
    k.e("s_mul_i32 s33, s33, %d" % (21*160))
    k.e("v_mul_u32_u24 v12, 160, v3")
    k.e("v_lshl_add_u32 v12, v2, 4, v12")
    k.e("v_add_u32 v12, s33, v12")
    for nt in range(2):
        for mt in range(3):
            a = KD + (mt*2+nt)*4
            conds = []
            if nt == 1: conds.append("v_cmp_ge_u32 vcc, 4, v3")
            if mt == 2: conds.append("v_cmp_gt_u32 vcc, 2, v2")
            if conds:
                k.e("s_mov_b64 s[44:45], exec")
                for cnd in conds:
                    k.e(cnd)
                    k.e("s_and_b64 exec, exec, vcc")
            k.e("buffer_store_dwordx4 v[%d:%d], v12, s[24:27], 0 offen offset:%d" % (a, a+3, nt*16*160 + mt*64))
            if conds:
                k.e("s_mov_b64 exec, s[44:45]")
    k.label(lfin)
    k.e("s_waitcnt vmcnt(0)")

if __name__ == "__main__":
    k1 = gen_k1()
    txt = build_file(["dev build"], [(k1, (256,1,1), (512,1,1), K1_LDS)])
    open("k1.s", "w").write(txt)
    print("lines", txt.count("\n"))
```

```python
from gen import *

KVB_STRIDE = 144
def gen_kr():
    k = K("hh_kr_kernel", nvgpr=192)
    lend = "L_kr_end"
    k.e("s_cmp_ge_u32 s2, 256")
    k.e("s_cbranch_scc1 %s" % lend)
    k.e("s_load_dwordx2 s[40:41], s[0:1], 72")
    k.e("s_and_b32 s28, s2, 7"); k.e("s_lshl_b32 s28, s28, 2")
    k.e("s_bfe_u32 s29, s2, 0x20003"); k.e("s_add_u32 s28, s28, s29")
    k.e("s_lshr_b32 s29, s2, 5")
    lane_ids(k)
    k.e("s_waitcnt lgkmcnt(0)")
    srd(k, 8, 40, SZ_KVP, WS_KVP)
    srd(k, 12, 40, SZ_PHIQ, WS_PHIQ)
    srd(k, 16, 40, SZ_X, WS_O)
    for r in range(4): k.e("v_mov_b32 v%d, 0" % (4+r))
    k.e("v_lshlrev_b32 v8, 4, v0")
    k.e("ds_write_b128 v8, v[4:7]")
    k.e("v_cmp_gt_u32 vcc, 64, v0")
    k.e("s_and_saveexec_b64 s[44:45], vcc")
    k.e("ds_write_b128 v8, v[4:7] offset:4096")
    k.e("s_mov_b64 exec, s[44:45]")
    k.e("s_mul_i32 s33, s28, 3360")
    k.e("v_lshlrev_b32 v9, 4, v0")
    k.e("v_add_u32 v9, s33, v9")
    k.e("v_cmp_gt_u32 vcc, 210, v0")
    k.e("s_and_saveexec_b64 s[44:45], vcc")
    for rb in range(32):
        k.e("s_mov_b32 s33, %d" % (rb*107520))
        k.e("buffer_load_dwordx4 v[%d:%d], v9, s[8:11], s33 offen" % (64+4*rb, 67+4*rb))
    k.e("s_mov_b64 exec, s[44:45]")
    k.e("s_lshl_b32 s33, s29, 8")
    k.e("s_lshl_b32 s34, s30, 6")
    k.e("s_add_u32 s33, s33, s34")
    k.e("v_add_u32 v10, s33, v3")
    k.e("v_mul_u32_u24 v11, 2560, v10")
    k.e("s_mul_i32 s34, s28, 80")
    k.e("v_lshl_add_u32 v11, v2, 4, v11")
    k.e("v_add_u32 v11, s34, v11")
    PF = 16
    for st in range(4):
        k.e("s_mov_b32 s35, %d" % (st*16*2560))
        k.e("buffer_load_dwordx4 v[%d:%d], v11, s[12:15], s35 offen" % (PF+st*8, PF+st*8+3))
        k.e("buffer_load_dwordx4 v[%d:%d], v11, s[12:15], s35 offen offset:64" % (PF+st*8+4, PF+st*8+7))
    k.e("s_waitcnt vmcnt(8)")
    k.e("v_cmp_gt_u32 vcc, 210, v0")
    k.e("s_and_saveexec_b64 s[44:45], vcc")
    for rb in range(1, 32):
        for q in range(0, 4, 2):
            k.e("v_pk_add_f32 v[%d:%d], v[%d:%d], v[%d:%d]" % (64+q, 65+q, 64+q, 65+q, 64+4*rb+q, 65+4*rb+q))
    k.e("v_cvt_pk_bf16_f32 v12, v64, v65")
    k.e("v_cvt_pk_bf16_f32 v13, v66, v67")
    k.e("v_mul_u32_u24 v14, 6554, v0"); k.e("v_lshrrev_b32 v14, 16, v14")
    k.e("v_mul_u32_u24 v15, 10, v14"); k.e("v_sub_u32 v15, v0, v15")
    k.e("v_mul_u32_u24 v14, %d, v14" % KVB_STRIDE)
    k.e("v_lshl_add_u32 v14, v15, 3, v14")
    k.e("s_waitcnt lgkmcnt(0)")
    k.e("s_barrier")
    k.e("ds_write_b64 v14, v[12:13]")
    k.e("s_mov_b64 exec, s[44:45]")
    k.e("s_waitcnt lgkmcnt(0)")
    k.e("s_barrier")
    KF = 48
    k.e("v_mul_u32_u24 v12, %d, v3" % KVB_STRIDE)
    k.e("v_lshl_add_u32 v12, v2, 4, v12")
    for ks in range(2):
        for dt in range(2):
            r = KF + (ks*2+dt)*4
            k.e("ds_read_b128 v[%d:%d], v12 offset:%d" % (r, r+3, dt*16*KVB_STRIDE + ks*64))
    k.e("v_lshlrev_b32 v13, 4, v2")
    for ks in range(2):
        k.e("ds_read_b128 v[%d:%d], v13 offset:%d" % (64+ks*4, 67+ks*4, 20*KVB_STRIDE + ks*64))
    k.e("v_mul_u32_u24 v14, 1280, v10")
    k.e("s_mul_i32 s34, s28, 40")
    k.e("v_lshl_add_u32 v14, v2, 3, v14")
    k.e("v_add_u32 v14, s34, v14")
    k.e("s_waitcnt vmcnt(0) lgkmcnt(0)")
    D = 72
    for st in range(4):
        for r in range(12): k.e("v_mov_b32 v%d, 0" % (D+r))
        k.e("s_nop 1")
        for ks in range(2):
            pf = PF + st*8 + ks*4
            for dt in range(2):
                kf = KF + (ks*2+dt)*4
                k.e("v_mfma_f32_16x16x32_bf16 v[%d:%d], v[%d:%d], v[%d:%d], v[%d:%d]" % (D+dt*4, D+dt*4+3, kf, kf+3, pf, pf+3, D+dt*4, D+dt*4+3))
            k.e("v_mfma_f32_16x16x32_bf16 v[%d:%d], v[%d:%d], v[%d:%d], v[%d:%d]" % (D+8, D+11, 64+ks*4, 67+ks*4, pf, pf+3, D+8, D+11))
        k.e("s_nop 7"); k.e("s_nop 7")
        k.e("v_cvt_pk_bf16_f32 v84, v%d, v%d" % (D+8, D+8))
        k.e("v_and_b32 v84, 0xffff0000, v84")
        k.e("v_add_f32 v84, 0x358637bd, v84")
        k.e("v_cvt_pk_bf16_f32 v84, v84, v84")
        k.e("v_and_b32 v84, 0xffff0000, v84")
        k.e("v_rcp_f32 v84, v84")
        for dt in range(2):
            k.e("v_cvt_pk_bf16_f32 v86, v%d, v%d" % (D+dt*4, D+dt*4+1))
            k.e("v_cvt_pk_bf16_f32 v87, v%d, v%d" % (D+dt*4+2, D+dt*4+3))
            for q in range(2):
                k.e("v_lshlrev_b32 v88, 16, v%d" % (86+q))
                k.e("v_and_b32 v89, 0xffff0000, v%d" % (86+q))
                k.e("v_mul_f32 v88, v88, v84")
                k.e("v_mul_f32 v89, v89, v84")
                k.e("v_cvt_pk_bf16_f32 v%d, v88, v89" % (90+q))
            if dt == 1:
                k.e("v_cmp_eq_u32 vcc, 0, v2")
                k.e("s_and_saveexec_b64 s[44:45], vcc")
            k.e("s_mov_b32 s35, %d" % (st*16*1280))
            k.e("buffer_store_dwordx2 v[90:91], v14, s[16:19], s35 offen offset:%d" % (dt*32))
            if dt == 1:
                k.e("s_mov_b64 exec, s[44:45]")
            k.e("s_nop 1")
    k.label(lend)
    return k

SA_BYTES = 64*256
SB_STAGE = SA_BYTES + 128*160
SB_NST = 4
def gen_stream(name, ptrA, offA, rowA, ptrB, nk, ptrR, offR, out_ptr, out_off, nbB, nbA):
    k = K(name, nvgpr=256 if DIAG else 128)
    k.diag = DIAG
    k.stamp_init()
    k.stamp(0)
    lend = "L_%s_end" % name
    k.e("s_cmp_ge_u32 s2, 256")
    k.e("s_cbranch_scc1 %s" % lend)
    k.e("s_load_dwordx2 s[4:5], s[0:1], %d" % ptrB[0])
    k.e("s_load_dwordx2 s[6:7], s[0:1], %d" % ptrR[0])
    k.e("s_load_dwordx2 s[38:39], s[0:1], %d" % out_ptr)
    k.e("s_load_dwordx2 s[40:41], s[0:1], 72")
    k.e("s_and_b32 s28, s2, 7"); k.e("s_lshl_b32 s28, s28, 2")
    k.e("s_bfe_u32 s29, s2, 0x20003"); k.e("s_add_u32 s28, s28, s29")
    k.e("s_lshr_b32 s29, s2, 5")
    lane_ids(k)
    k.e("s_mul_i32 s33, s30, 320")
    k.e("s_mul_i32 s34, s29, 160")
    for i in range(5):
        k.e("v_add_u32 v12, s33, v1")
        if i: k.e("v_add_u32 v12, %d, v12" % (64*i))
        k.e("v_mul_u32_u24 v13, 6554, v12"); k.e("v_lshrrev_b32 v13, 16, v13")
        k.e("v_mul_u32_u24 v14, 10, v13"); k.e("v_sub_u32 v14, v12, v14")
        k.e("v_mul_u32_u24 v%d, 1280, v13" % (4+i))
        k.e("v_lshl_add_u32 v%d, v14, 4, v%d" % (4+i, 4+i))
        k.e("v_add_u32 v%d, s34, v%d" % (4+i, 4+i))
    k.e("s_lshl_b32 s33, s28, 6"); k.e("s_lshl_b32 s34, s30, 4"); k.e("s_add_u32 s33, s33, s34")
    for i in range(4):
        k.e("v_add_u32 v12, %d, v2" % (4*i))
        k.e("v_xor_b32 v13, v12, v3")
        k.e("v_add_u32 v12, s33, v12")
        k.e("v_mul_u32_u24 v%d, %d, v12" % (20+i, rowA))
        k.e("v_lshl_add_u32 v%d, v13, 4, v%d" % (20+i, 20+i))
    k.e("s_waitcnt lgkmcnt(0)")
    srd(k, 8, 40, nbA, offA)
    srd(k, 12, 4, nbB)
    srd(k, 16, 6, SZ_X, offR)
    srd(k, 20, 38, SZ_X, out_off)
    k.e("s_lshl_b32 s35, s30, 10")
    k.e("s_mul_i32 s42, s30, 5120")
    nst = (nk + 3)//4
    def dma(st):
        sb = (st % SB_NST)*SB_STAGE
        k.e("s_mov_b32 s36, 0x%x" % (st*128*1280))
        k.e("s_add_u32 s37, s42, %d" % (sb + SA_BYTES))
        for i in range(5):
            k.e("s_mov_b32 m0, s37")
            k.e("s_nop 0")
            k.vm("buffer_load_dwordx4 v%d, s[12:15], s36 offen lds" % (4+i), "dma%d" % st)
            if i < 4: k.e("s_add_u32 s37, s37, 1024")
        k.e("s_mov_b32 s36, 0x%x" % (st*256))
        k.e("s_lshl_b32 s37, s35, 2")
        k.e("s_add_u32 s37, s37, %d" % sb)
        for i in range(4):
            k.e("s_mov_b32 m0, s37")
            k.e("s_nop 0")
            k.vm("buffer_load_dwordx4 v%d, s[8:11], s36 offen lds" % (20+i), "dma%d" % st)
            if i < 3: k.e("s_add_u32 s37, s37, 1024")
    for st in range(min(SB_NST, nst)):
        dma(st)
    k.e("v_add_u32 v9, s33, v3")
    k.e("v_mul_u32_u24 v11, 1280, v9")
    k.e("s_mul_i32 s34, s29, 160")
    k.e("v_lshl_add_u32 v11, v2, 3, v11")
    k.e("v_add_u32 v11, s34, v11")
    RES = 96
    for t in range(5):
        k.vm("buffer_load_dwordx2 v[%d:%d], v11, s[16:19], 0 offen offset:%d" % (RES+2*t, RES+2*t+1, t*32), "res")
    k.e("v_lshrrev_b32 v12, 2, v3")
    k.e("v_lshl_add_u32 v12, v2, 2, v12")
    k.e("v_mul_u32_u24 v12, 160, v12")
    k.e("v_and_b32 v13, 3, v3")
    k.e("v_lshl_add_u32 v12, v13, 3, v12")
    k.e("v_add_u32 v12, %d, v12" % SA_BYTES)
    k.e("v_lshrrev_b32 v13, 1, v2")
    k.e("v_and_b32 v14, 1, v2")
    k.e("s_lshl_b32 s34, s30, 12")
    k.e("v_lshl_add_u32 v15, v3, 8, s34")
    k.e("v_lshl_add_u32 v15, v14, 3, v15")
    for kl in range(4):
        for p in range(2):
            r = 24 + kl*2 + p
            k.e("v_add_u32 v%d, %d, v13" % (r, 4*kl + 2*p))
            k.e("v_xor_b32 v%d, v%d, v3" % (r, r))
            k.e("v_lshl_add_u32 v%d, v%d, 4, v15" % (r, r))
    for r in range(8):
        k.e("v_add_u32 v%d, %d, v%d" % (120+r, 2*SB_STAGE, 24+r))
    k.e("v_add_u32 v10, %d, v12" % (2*SB_STAGE))
    ACC = 32
    BF = 52
    AF = 108
    for r in range(20): k.e("v_mov_b32 v%d, 0" % (ACC+r))
    def reads(kk):
        b = kk & 1
        stg = (kk//4) % SB_NST
        sb = (stg & 1)*SB_STAGE
        ar = (24 if stg < 2 else 120); br = (12 if stg < 2 else 10)
        kl = kk % 4
        k.lg("ds_read_b64 v[%d:%d], v%d offset:%d" % (AF+b*4, AF+b*4+1, ar+kl*2, sb))
        k.lg("ds_read_b64 v[%d:%d], v%d offset:%d" % (AF+b*4+2, AF+b*4+3, ar+1+kl*2, sb))
        off = sb + kl*32*160
        for t in range(5):
            r = BF + b*20 + t*4
            k.lg("ds_read_b64_tr_b16 v[%d:%d], v%d offset:%d" % (r, r+1, br, off + t*32))
            k.lg("ds_read_b64_tr_b16 v[%d:%d], v%d offset:%d" % (r+2, r+3, br, off + t*32 + 16*160))
    k.wait_vm("dma0")
    k.e("s_barrier")
    k.stamp(1)
    reads(0)
    for kk in range(nk):
        if kk in (4, 8, 16, 32): k.stamp({4: 2, 8: 3, 16: 4, 32: 5}[kk])
        k.e("s_waitcnt lgkmcnt(0)"); k.lg_q = []
        if kk + 1 < nk:
            if (kk+1) % 4 == 0:
                st = (kk+1)//4
                k.wait_vm("dma%d" % st)
                k.e("s_barrier")
                if st + SB_NST - 1 < nst:
                    dma(st + SB_NST - 1)
            reads(kk+1)
        b = kk & 1
        for t in range(5):
            a = ACC + t*4
            k.e("v_mfma_f32_16x16x32_bf16 v[%d:%d], v[%d:%d], v[%d:%d], v[%d:%d]" %
                (a, a+3, BF+b*20+t*4, BF+b*20+t*4+3, AF+b*4, AF+b*4+3, a, a+3))
    k.stamp(6)
    k.wait_vm("res")
    k.e("s_nop 7"); k.e("s_nop 7")
    for t in range(5):
        a = ACC + t*4
        k.e("v_cvt_pk_bf16_f32 v92, v%d, v%d" % (a, a+1))
        k.e("v_cvt_pk_bf16_f32 v93, v%d, v%d" % (a+2, a+3))
        for q in range(2):
            k.e("v_lshlrev_b32 v116, 16, v%d" % (92+q))
            k.e("v_and_b32 v117, 0xffff0000, v%d" % (92+q))
            k.e("v_lshlrev_b32 v118, 16, v%d" % (RES+2*t+q))
            k.e("v_and_b32 v119, 0xffff0000, v%d" % (RES+2*t+q))
            k.e("v_pk_add_f32 v[116:117], v[116:117], v[118:119]")
            k.e("v_cvt_pk_bf16_f32 v%d, v116, v117" % (94+q))
        k.e("buffer_store_dwordx2 v[94:95], v11, s[20:23], 0 offen offset:%d" % (t*32))
        k.e("s_nop 1")
    k.label(lend)
    return k

def gen_k3():
    k = K("hh_k3_kernel", nvgpr=256)
    lend = "L_k3_end"
    k.e("s_cmp_ge_u32 s2, 256")
    k.e("s_cbranch_scc1 %s" % lend)
    k.e("s_load_dwordx2 s[6:7], s[0:1], 40")
    k.e("s_load_dwordx2 s[40:41], s[0:1], 72")
    k.e("s_and_b32 s28, s2, 7"); k.e("s_lshl_b32 s28, s28, 2")
    k.e("s_bfe_u32 s29, s2, 0x20003"); k.e("s_add_u32 s28, s28, s29")
    k.e("s_lshr_b32 s29, s2, 5")
    lane_ids(k)
    k.e("s_waitcnt lgkmcnt(0)")
    srd(k, 8, 40, SZ_X, WS_H)
    srd(k, 16, 6, 640*1728*2)
    srd(k, 20, 40, SZ_H1, WS_H1)
    k.e("s_lshl_b32 s42, s28, 6")
    ln_prologue(k, 8, "s42")
    k.e("s_mul_i32 s35, s30, 1920")
    k.e("s_mul_i32 s33, s30, 120")
    k.e("s_mul_i32 s34, s29, 432")
    k.e("s_mov_b32 s36, -1"); k.e("s_mov_b32 s37, 0x00ffffff")
    for vi, add in ((8, 0), (9, 64)):
        k.e("v_add_u32 v12, s33, v1")
        if add: k.e("v_add_u32 v12, %d, v12" % add)
        k.e("v_mul_u32_u24 v13, 2185, v12"); k.e("v_lshrrev_b32 v13, 16, v13")
        k.e("v_mul_u32_u24 v14, 30, v13"); k.e("v_sub_u32 v14, v12, v14")
        k.e("v_mul_u32_u24 v%d, 3456, v13" % vi)
        k.e("v_lshl_add_u32 v%d, v14, 4, v%d" % (vi, vi))
        k.e("v_add_u32 v%d, s34, v%d" % (vi, vi))
    dma, reads, ACC, AF, BF = main_loop_Ares(k, 16)
    ln_compute(k, dma)
    frag_addr_setup(k)
    run_main_loop(k, dma, reads, ACC, AF, BF)
    k.c("---- epilogue: silu, store")
    k.e("s_lshl_b32 s33, s31, 5"); k.e("s_add_u32 s33, s33, s42")
    k.e("v_add_u32 v12, s33, v3")
    k.e("v_mul_u32_u24 v12, 3456, v12")
    k.e("v_lshl_add_u32 v12, v2, 3, v12")
    k.e("s_mul_i32 s34, s29, 432")
    k.e("s_lshl_b32 s33, s32, 7"); k.e("s_add_u32 s33, s33, s34")
    k.e("v_add_u32 v12, s33, v12")
    k.e("s_lshl_b32 s33, s32, 6")
    k.e("v_lshl_add_u32 v13, v2, 2, s33")
    k.e("s_mov_b32 s47, 0x%x" % LOG2E)
    for t in range(4):
        k.e("v_add_u32 v14, %d, v13" % (16*t))
        k.e("v_cmp_gt_u32 vcc, 216, v14")
        k.e("s_and_saveexec_b64 s[44:45], vcc")
        for mt in range(2):
            a = ACC + (mt*4 + t)*4
            k.e("v_cvt_pk_bf16_f32 v16, v%d, v%d" % (a, a+1))
            k.e("v_cvt_pk_bf16_f32 v17, v%d, v%d" % (a+2, a+3))
            for q in range(2):
                k.e("v_lshlrev_b32 v18, 16, v%d" % (16+q))
                k.e("v_and_b32 v19, 0xffff0000, v%d" % (16+q))
                k.e("v_mul_f32 v20, s47, v18"); k.e("v_mul_f32 v21, s47, v19")
                k.e("v_exp_f32 v20, -v20"); k.e("v_exp_f32 v21, -v21")
                k.e("s_nop 0")
                k.e("v_add_f32 v20, 1.0, v20"); k.e("v_add_f32 v21, 1.0, v21")
                k.e("v_rcp_f32 v20, v20"); k.e("v_rcp_f32 v21, v21")
                k.e("s_nop 0")
                k.e("v_mul_f32 v18, v18, v20"); k.e("v_mul_f32 v19, v19, v21")
                k.e("v_cvt_pk_bf16_f32 v%d, v18, v19" % (22+q))
            k.e("s_mov_b32 s35, %d" % (mt*16*3456))
            k.e("buffer_store_dwordx2 v[22:23], v12, s[20:23], s35 offen offset:%d" % (t*32))
            k.e("s_nop 1")
        k.e("s_mov_b64 exec, s[44:45]")
    k.label(lend)
    return k

HEADER = """Kernarg layout for this problem (80 bytes, ptrs only, base s[0:1]):
  offset   0: d_in[0] A_x (1,2048,640) bf16 ; 8: A_wqkv (640,1920) ; 16: A_w_phi (32,20,20) ; 24: A_wo (640,640)
  offset  32: B_x (unused by the reference) ; 40: B_w1 (640,1728) ; 48: B_w2 (1728,640) ; 56: d_out ; 64: d_debug ; 72: d_ws
Pipeline (generated by my own scripts): K1 LN1+QKV+hedgehog features+partial kv ; KR kv reduce + o ;
K2 h = x + o@wo ; K3 h1 = silu(LN(h)@w1) ; K4 out = h + h1@w2""".split("\n")

def build(path):
    k1 = gen_k1(); kr = gen_kr(); k3 = gen_k3()
    k2 = gen_stream("hh_k2_kernel", None, WS_O, 1280, (24,), 20, (0,), 0, 72, WS_H, 640*640*2, SZ_X)
    k4 = gen_stream("hh_k4_kernel", None, WS_H1, 3456, (48,), 54, (72,), WS_H, 56, 0, 1728*640*2, SZ_H1)
    txt = build_file(HEADER, [(k1, (256,1,1), (512,1,1), K1_LDS),
                              (kr, (256,1,1), (256,1,1), 5120),
                              (k2, (256,1,1), (256,1,1), SB_NST*SB_STAGE),
                              (k3, (256,1,1), (512,1,1), B_BASE + NSTAGE*B_STAGE),
                              (k4, (256,1,1), (256,1,1), SB_NST*SB_STAGE)])
    open(path, "w").write(txt)
    return txt

if __name__ == "__main__":
    import gen
    if len(sys.argv) > 1 and sys.argv[1] == "diag":
        gen.DIAG = True; DIAG = True
        t = build("diag.s")
    else:
        t = build("full.s")
    print("lines", t.count("\n"), "bytes", len(t))
```

```python
from asmgen import *
import sys

NAME = "sequential_preLN__linear_kernel_hedgehog__dense_activation_silu__prompt"
WS_PHIQ = 0
WS_KVP  = 0x600000
WS_O    = 0xA00000
WS_H    = 0xD00000
WS_H1   = 0x1000000
SZ_X    = 2048*640*2
SZ_PHIQ = 2048*32*40*2
SZ_KVP  = 32*32*840*4
SZ_H1   = 2048*1728*2

A_STRIDE = 1312
A_BYTES  = 64*A_STRIDE
B_STAGE  = 32*480
NSTAGE   = 5
B_BASE   = A_BYTES
WP_BASE  = 98304
K1_LDS   = B_BASE + NSTAGE*B_STAGE
T_BASE   = 0
T_STRIDE = 496
P_BASE   = 32768
PHIK_BASE = 73728

LOG2E = 0x3fb8aa3b

def lane_ids(k):
    k.e("v_and_b32 v1, 63, v0")
    k.e("v_lshrrev_b32 v2, 4, v1")
    k.e("v_and_b32 v3, 15, v1")
    k.e("v_lshrrev_b32 v4, 6, v0")
    k.e("s_nop 0")
    k.e("v_readfirstlane_b32 s30, v4")

def ln_prologue(k, srd_x, s_row0):
    k.c("---- LN prologue: loads")
    k.e("v_lshrrev_b32 v5, 3, v0")
    k.e("v_and_b32 v6, 7, v0")
    k.e("v_add_u32 v7, %s, v5" % s_row0)
    k.e("v_mul_u32_u24 v7, 1280, v7")
    k.e("v_lshl_add_u32 v7, v6, 4, v7")
    for j in range(10):
        k.vm("buffer_load_dwordx4 v[%d:%d], v7, s[%d:%d], 0 offen offset:%d" % (16+4*j, 19+4*j, srd_x, srd_x+3, j*128), "x")

def ln_compute(k, dma=None):
    k.c("---- LN compute")
    if dma:
        for i in range(NSTAGE):
            dma(i)
    k.wait_vm("x")
    k.stamp(8)
    U = 160
    k.e("v_mov_b32 v56, 0x3f803f80")
    for a in range(4): k.e("v_mov_b32 v%d, 0" % (57+a))
    for r in range(40):
        k.e("v_dot2_f32_bf16 v%d, v%d, v56, v%d" % (57 + (r & 3), 16+r, 57 + (r & 3)))
        k.e("v_lshlrev_b32 v%d, 16, v%d" % (U+2*r, 16+r))
        k.e("v_and_b32 v%d, 0xffff0000, v%d" % (U+2*r+1, 16+r))
    k.e("v_add_f32 v57, v57, v58"); k.e("v_add_f32 v59, v59, v60")
    k.e("v_add_f32 v57, v57, v59")
    def red8(v):
        k.e("s_nop 1")
        k.e("v_add_f32_dpp v61, %s, %s quad_perm:[1,0,3,2] row_mask:0xf bank_mask:0xf" % (v, v))
        k.e("s_nop 1")
        k.e("v_add_f32_dpp %s, v61, v61 quad_perm:[2,3,0,1] row_mask:0xf bank_mask:0xf" % v)
        k.e("s_nop 1")
        k.e("v_add_f32_dpp v61, %s, %s row_half_mirror row_mask:0xf bank_mask:0xf" % (v, v))
        k.e("v_mov_b32 %s, v61" % v)
    red8("v57")
    k.e("v_mul_f32 v57, 0x3acccccd, v57")
    k.e("v_mov_b32 v62, v57"); k.e("v_mov_b32 v63, v57")
    for a in range(8): k.e("v_mov_b32 v%d, 0" % (64+a))
    for r in range(40):
        t = 72 + 2*(r & 3); c = 64 + 2*(r & 3)
        k.e("v_pk_add_f32 v[%d:%d], v[%d:%d], v[62:63] neg_lo:[0,1] neg_hi:[0,1]" % (t, t+1, U+2*r, U+2*r+1))
        k.e("v_pk_fma_f32 v[%d:%d], v[%d:%d], v[%d:%d], v[%d:%d]" % (c, c+1, t, t+1, t, t+1, c, c+1))
    k.e("v_pk_add_f32 v[64:65], v[64:65], v[66:67]"); k.e("v_pk_add_f32 v[68:69], v[68:69], v[70:71]")
    k.e("v_pk_add_f32 v[64:65], v[64:65], v[68:69]")
    k.e("v_add_f32 v60, v64, v65")
    red8("v60")
    k.e("v_mul_f32 v60, 0x3acccccd, v60")
    k.e("v_cvt_pk_bf16_f32 v61, v57, v60")
    k.e("v_lshlrev_b32 v62, 16, v61")
    k.e("v_and_b32 v63, 0xffff0000, v61")
    k.e("v_add_f32 v63, 0x3727c5ac, v63")
    k.e("v_cvt_pk_bf16_f32 v63, v63, v63")
    k.e("v_and_b32 v63, 0xffff0000, v63")
    k.e("v_sqrt_f32 v63, v63")
    k.e("s_nop 0")
    k.e("v_cvt_pk_bf16_f32 v63, v63, v63")
    k.e("v_and_b32 v63, 0xffff0000, v63")
    k.e("v_rcp_f32 v66, v63")
    k.e("s_nop 0")
    k.e("v_mov_b32 v67, v66")
    k.e("v_mov_b32 v63, v62")
    k.e("v_mul_u32_u24 v68, %d, v5" % A_STRIDE)
    k.e("v_lshrrev_b32 v69, 2, v6")
    k.e("v_lshl_add_u32 v68, v69, 6, v68")
    k.e("v_and_b32 v69, 1, v6")
    k.e("v_lshl_add_u32 v68, v69, 5, v68")
    k.e("v_bfe_u32 v69, v6, 1, 1")
    k.e("v_lshl_add_u32 v68, v69, 3, v68")
    for j in range(10):
        T = 72; C = 80; O = 84
        for d in range(4):
            r = 4*j + d
            k.e("v_pk_add_f32 v[%d:%d], v[%d:%d], v[62:63] neg_lo:[0,1] neg_hi:[0,1]" % (T+2*d, T+2*d+1, U+2*r, U+2*r+1))
        for d in range(4):
            k.e("v_cvt_pk_bf16_f32 v%d, v%d, v%d" % (C+d, T+2*d, T+2*d+1))
        for d in range(4):
            k.e("v_lshlrev_b32 v%d, 16, v%d" % (T+2*d, C+d))
            k.e("v_and_b32 v%d, 0xffff0000, v%d" % (T+2*d+1, C+d))
        for d in range(4):
            k.e("v_pk_mul_f32 v[%d:%d], v[%d:%d], v[66:67]" % (T+2*d, T+2*d+1, T+2*d, T+2*d+1))
        for d in range(4):
            k.e("v_cvt_pk_bf16_f32 v%d, v%d, v%d" % (O+d, T+2*d, T+2*d+1))
        k.lg("ds_write_b64 v68, v[%d:%d] offset:%d" % (O, O+1, j*128))
        k.lg("ds_write_b64 v68, v[%d:%d] offset:%d" % (O+2, O+3, j*128 + 16))

def dma_setup_240(k, col_expr_setup):
    pass

def main_loop_Ares(k, srd_w, nk=20):
    ACC = 96; AF = 128; BF = 144
    def dma(st):
        k.e("s_mov_b32 s33, 0x%x" % (st*32*3840) if srd_w == 12 else "s_mov_b32 s33, 0x%x" % (st*32*3456))
        base = B_BASE + (st % NSTAGE)*B_STAGE
        k.e("s_add_u32 s34, s35, 0x%x" % base)
        k.e("s_mov_b32 m0, s34")
        k.e("s_nop 0")
        k.vm("buffer_load_dwordx4 v8, s[%d:%d], s33 offen lds" % (srd_w, srd_w+3), "dma%d" % st)
        k.e("s_add_u32 s34, s34, 1024")
        k.e("s_mov_b32 m0, s34")
        k.e("s_mov_b64 exec, s[36:37]")
        k.vm("buffer_load_dwordx4 v9, s[%d:%d], s33 offen lds" % (srd_w, srd_w+3), "dma%d" % st)
        k.e("s_mov_b64 exec, -1")
    def reads(kk):
        b = kk & 1
        for mt in range(2):
            k.lg("ds_read_b128 v[%d:%d], v10 offset:%d" % (AF+b*8+mt*4, AF+b*8+mt*4+3, kk*64 + mt*16*A_STRIDE))
        sb = (kk % NSTAGE)*B_STAGE
        va = 11
        if sb >= 4*B_STAGE:
            sb -= 4*B_STAGE; va = 13
        for t in range(4):
            r = BF + b*16 + t*4
            k.lg("ds_read_b64_tr_b16 v[%d:%d], v%d offset:%d" % (r, r+1, va, sb + t*32))
            k.lg("ds_read_b64_tr_b16 v[%d:%d], v%d offset:%d" % (r+2, r+3, va, sb + t*32 + 16*480))
    return dma, reads, ACC, AF, BF

def run_main_loop(k, dma, reads, ACC, AF, BF, nk=20):
    k.c("---- main loop")
    for r in range(32):
        k.e("v_mov_b32 v%d, 0" % (ACC + r))
    k.wait_vm("dma0")
    k.e("s_waitcnt lgkmcnt(0)"); k.lg_q = []
    k.e("s_barrier")
    reads(0)
    for kk in range(nk):
        k.e("s_waitcnt lgkmcnt(0)"); k.lg_q = []
        if kk + 1 < nk:
            k.wait_vm("dma%d" % (kk+1))
        k.e("s_barrier")
        if kk + NSTAGE < nk:
            dma(kk + NSTAGE)
        if kk + 1 < nk:
            reads(kk + 1)
        b = kk & 1
        for mt in range(2):
            for t in range(4):
                a = ACC + (mt*4 + t)*4
                k.e("v_mfma_f32_16x16x32_bf16 v[%d:%d], v[%d:%d], v[%d:%d], v[%d:%d]" %
                    (a, a+3, BF+b*16+t*4, BF+b*16+t*4+3, AF+b*8+mt*4, AF+b*8+mt*4+3, a, a+3))
    k.e("s_nop 7"); k.e("s_nop 7")

def frag_addr_setup(k):
    k.e("s_and_b32 s31, s30, 1")
    k.e("s_lshr_b32 s32, s30, 1")
    k.e("s_mul_i32 s33, s31, %d" % (32*A_STRIDE))
    k.e("v_mul_u32_u24 v10, %d, v3" % A_STRIDE)
    k.e("v_lshl_add_u32 v10, v2, 4, v10")
    k.e("v_add_u32 v10, s33, v10")
    k.e("v_lshrrev_b32 v11, 2, v3")
    k.e("v_lshl_add_u32 v11, v2, 2, v11")
    k.e("v_mul_u32_u24 v11, 480, v11")
    k.e("v_and_b32 v12, 3, v3")
    k.e("v_lshl_add_u32 v11, v12, 3, v11")
    k.e("s_lshl_b32 s33, s32, 7")
    k.e("s_add_u32 s33, s33, %d" % B_BASE)
    k.e("v_add_u32 v11, s33, v11")
    k.e("v_add_u32 v13, %d, v11" % (4*B_STAGE))

DIAG = False
def gen_k1():
    k = K("hh_k1_kernel", nvgpr=256)
    k.diag = DIAG
    k.stamp_init()
    k.stamp(0)
    k.e("s_cmp_ge_u32 s2, 256")
    lend = "L_k1_end"
    k.e("s_cbranch_scc1 %s" % lend)
    k.e("s_load_dwordx4 s[4:7], s[0:1], 0")
    k.e("s_load_dwordx2 s[38:39], s[0:1], 16")
    k.e("s_load_dwordx2 s[40:41], s[0:1], 72")
    k.e("s_lshr_b32 s28, s2, 3")
    k.e("s_and_b32 s29, s2, 7")
    lane_ids(k)
    k.e("s_waitcnt lgkmcnt(0)")
    srd(k, 8, 4, SZ_X)
    srd(k, 12, 6, 640*1920*2)
    srd(k, 16, 38, 32*400*2)
    srd(k, 20, 40, SZ_PHIQ, WS_PHIQ)
    srd(k, 24, 40, SZ_KVP, WS_KVP)
    k.e("s_lshl_b32 s42, s28, 6")
    ln_prologue(k, 8, "s42")
    k.e("s_mul_i32 s35, s30, 1920")
    k.e("s_mul_i32 s33, s30, 120")
    k.e("s_mul_i32 s34, s29, 160")
    k.e("s_mov_b32 s36, -1"); k.e("s_mov_b32 s37, 0x00ffffff")
    for vi, add in ((8, 0), (9, 64)):
        k.e("v_add_u32 v12, s33, v1")
        if add: k.e("v_add_u32 v12, %d, v12" % add)
        k.e("v_mul_u32_u24 v13, 2185, v12"); k.e("v_lshrrev_b32 v13, 16, v13")
        k.e("v_mul_u32_u24 v14, 30, v13"); k.e("v_sub_u32 v14, v12, v14")
        k.e("v_mul_u32_u24 v15, 6554, v14"); k.e("v_lshrrev_b32 v15, 16, v15")
        k.e("v_mul_u32_u24 v%d, 3840, v13" % vi)
        k.e("v_mul_u32_u24 v13, 1280, v15"); k.e("v_add_u32 v%d, v%d, v13" % (vi, vi))
        k.e("v_mul_u32_u24 v15, 10, v15"); k.e("v_sub_u32 v14, v14, v15")
        k.e("v_lshl_add_u32 v%d, v14, 4, v%d" % (vi, vi))
        k.e("v_add_u32 v%d, s34, v%d" % (vi, vi))
    k.e("s_mul_i32 s33, s29, 3200")
    k.e("v_lshlrev_b32 v81, 3, v0")
    k.e("v_add_u32 v81, s33, v81")
    k.e("v_cmp_gt_u32 vcc, 400, v0")
    k.e("s_and_saveexec_b64 s[44:45], vcc")
    k.vm("buffer_load_dwordx2 v[240:241], v81, s[16:19], 0 offen", "wphi")
    k.e("s_mov_b64 exec, s[44:45]")
    dma, reads, ACC, AF, BF = main_loop_Ares(k, 12)
    k.stamp(1)
    ln_compute(k, dma)
    k.stamp(2)
    frag_addr_setup(k)
    k.stamp(3)
    run_main_loop(k, dma, reads, ACC, AF, BF)
    k.stamp(4)
    k1_epilogue(k, ACC)
    k.stamp(9)
    k.label(lend)
    return k

def k1_epilogue(k, ACC):
    k.c("---- epilogue: q,k,v tile to LDS (bf16)")
    k.e("s_barrier")
    k.e("v_mov_b32 v76, 0"); k.e("v_mov_b32 v77, 0"); k.e("v_mov_b32 v78, 0"); k.e("v_mov_b32 v79, 0")
    k.e("v_lshlrev_b32 v80, 4, v0")
    k.e("v_add_u32 v80, %d, v80" % WP_BASE)
    k.lg("ds_write_b128 v80, v[76:79]")
    k.e("v_mul_u32_u24 v84, 656, v0"); k.e("v_lshrrev_b32 v84, 16, v84")
    k.e("v_mul_u32_u24 v85, 100, v84"); k.e("v_sub_u32 v85, v0, v85")
    k.e("v_mul_u32_u24 v86, 13108, v85"); k.e("v_lshrrev_b32 v86, 16, v86")
    k.e("v_mul_u32_u24 v87, 5, v86"); k.e("v_sub_u32 v87, v85, v87")
    k.e("v_lshlrev_b32 v84, 11, v84")
    k.e("v_lshl_add_u32 v84, v86, 6, v84")
    k.e("v_lshl_add_u32 v84, v87, 3, v84")
    k.e("v_add_u32 v84, %d, v84" % WP_BASE)
    k.e("s_mul_i32 s33, s31, %d" % (32*T_STRIDE))
    k.e("s_lshl_b32 s34, s32, 7")
    k.e("s_add_u32 s33, s33, s34")
    k.e("v_mul_u32_u24 v12, %d, v3" % T_STRIDE)
    k.e("v_lshl_add_u32 v12, v2, 3, v12")
    k.e("v_add_u32 v12, s33, v12")
    skip = k.newlabel("L_skip_t3")
    for t in range(4):
        if t == 3:
            k.e("s_cmp_eq_u32 s32, 3")
            k.e("s_cbranch_scc1 %s" % skip)
        for mt in range(2):
            a = ACC + (mt*4 + t)*4
            k.e("v_cvt_pk_bf16_f32 v14, v%d, v%d" % (a, a+1))
            k.e("v_cvt_pk_bf16_f32 v15, v%d, v%d" % (a+2, a+3))
            k.lg("ds_write_b64 v12, v[14:15] offset:%d" % (T_BASE + mt*16*T_STRIDE + t*32))
    k.label(skip)
    k.e("s_waitcnt lgkmcnt(0)"); k.lg_q = []
    k.e("s_barrier")
    k.e("v_cmp_gt_u32 vcc, 400, v0")
    k.e("s_and_saveexec_b64 s[44:45], vcc")
    k.e("ds_write_b64 v84, v[240:241]")
    k.e("s_mov_b64 exec, s[44:45]")
    k.e("s_waitcnt lgkmcnt(0)")
    k.e("s_barrier")
    k.stamp(5)
    k.c("---- pq / pk : wave w -> head hh=w&3, which=w>>2")
    k.e("s_and_b32 s43, s30, 3")
    k.e("s_lshr_b32 s46, s30, 2")
    k.e("s_mul_i32 s33, s46, 160")
    k.e("s_mul_i32 s34, s43, 40")
    k.e("s_add_u32 s33, s33, s34")
    k.e("v_mul_u32_u24 v12, %d, v3" % T_STRIDE)
    k.e("v_lshl_add_u32 v12, v2, 3, v12")
    k.e("v_add_u32 v12, s33, v12")
    XF = 16
    for mt in range(4):
        k.lg("ds_read_b64 v[%d:%d], v12 offset:%d" % (XF+mt*4, XF+mt*4+1, T_BASE + mt*16*T_STRIDE))
        k.lg("ds_read_b64 v[%d:%d], v12 offset:%d" % (XF+mt*4+2, XF+mt*4+3, T_BASE + mt*16*T_STRIDE + 32))
    k.e("v_lshrrev_b32 v13, 2, v3")
    k.e("v_lshl_add_u32 v13, v2, 2, v13")
    k.e("v_lshlrev_b32 v13, 6, v13")
    k.e("v_and_b32 v14, 3, v3")
    k.e("v_lshl_add_u32 v13, v14, 3, v13")
    k.e("s_lshl_b32 s33, s43, 11")
    k.e("s_add_u32 s33, s33, %d" % WP_BASE)
    k.e("v_add_u32 v13, s33, v13")
    WF = 32
    for ft in range(2):
        k.lg("ds_read_b64_tr_b16 v[%d:%d], v13 offset:%d" % (WF+ft*4, WF+ft*4+1, ft*32))
        k.lg("ds_read_b64_tr_b16 v[%d:%d], v13 offset:%d" % (WF+ft*4+2, WF+ft*4+3, ft*32 + 16*64))
    PD = 40
    for r in range(32):
        k.e("v_mov_b32 v%d, 0" % (PD + r))
    k.e("s_waitcnt lgkmcnt(0)"); k.lg_q = []
    k.e("s_nop 1")
    for mt in range(4):
        for ft in range(2):
            a = PD + (mt*2 + ft)*4
            k.e("v_mfma_f32_16x16x32_bf16 v[%d:%d], v[%d:%d], v[%d:%d], v[%d:%d]" %
                (a, a+3, WF+ft*4, WF+ft*4+3, XF+mt*4, XF+mt*4+3, a, a+3))
    k.e("s_nop 7"); k.e("s_nop 7")
    k.e("s_mul_i32 s33, s30, 5120")
    k.e("s_add_u32 s33, s33, %d" % P_BASE)
    k.e("v_mul_u32_u24 v12, 80, v3")
    k.e("v_lshl_add_u32 v12, v2, 3, v12")
    k.e("v_add_u32 v12, s33, v12")
    for mt in range(4):
        for ft in range(2):
            a = PD + (mt*2 + ft)*4
            k.e("v_cvt_pk_bf16_f32 v14, v%d, v%d" % (a, a+1))
            k.e("v_cvt_pk_bf16_f32 v15, v%d, v%d" % (a+2, a+3))
            k.lg("ds_write_b64 v12, v[14:15] offset:%d" % (mt*16*80 + ft*32))
    k.e("s_waitcnt lgkmcnt(0)"); k.lg_q = []
    k.stamp(6)
    k.c("---- dual softmax: lane = row")
    k.e("v_mul_u32_u24 v12, 80, v1")
    k.e("v_add_u32 v12, s33, v12")
    PV = 16
    for j in range(5):
        k.lg("ds_read_b64 v[%d:%d], v12 offset:%d" % (PV+2*j, PV+2*j+1, 8*j))
    k.e("s_waitcnt lgkmcnt(0)"); k.lg_q = []
    U = 28
    for j in range(10):
        k.e("v_lshlrev_b32 v%d, 16, v%d" % (U+2*j, PV+j))
        k.e("v_and_b32 v%d, 0xffff0000, v%d" % (U+2*j+1, PV+j))
    k.e("v_max3_f32 v48, v%d, v%d, v%d" % (U, U+1, U+2))
    k.e("v_min3_f32 v49, v%d, v%d, v%d" % (U, U+1, U+2))
    for j in range(3, 19, 2):
        k.e("v_max3_f32 v48, v48, v%d, v%d" % (U+j, U+j+1))
        k.e("v_min3_f32 v49, v49, v%d, v%d" % (U+j, U+j+1))
    k.e("v_max_f32 v48, v48, v%d" % (U+19))
    k.e("v_min_f32 v49, v49, v%d" % (U+19))
    k.e("s_mov_b32 s47, 0x%x" % LOG2E)
    k.e("v_mul_f32 v50, s47, v48")
    k.e("v_mul_f32 v51, s47, v49")
    EP = 52; EN = 72
    for j in range(20):
        k.e("v_fma_f32 v%d, v%d, s47, -v50" % (EP+j, U+j))
        k.e("v_fma_f32 v%d, -v%d, s47, v51" % (EN+j, U+j))
    for j in range(20):
        k.e("v_exp_f32 v%d, v%d" % (EP+j, EP+j))
        k.e("v_exp_f32 v%d, v%d" % (EN+j, EN+j))
    k.e("s_nop 0")
    k.e("v_add_f32 v92, v%d, v%d" % (EP, EP+1))
    k.e("v_add_f32 v93, v%d, v%d" % (EN, EN+1))
    for j in range(2, 20):
        k.e("v_add_f32 v92, v92, v%d" % (EP+j))
        k.e("v_add_f32 v93, v93, v%d" % (EN+j))
    k.e("v_rcp_f32 v92, v92")
    k.e("v_rcp_f32 v93, v93")
    k.e("s_nop 0")
    PH = 16
    for j in range(10):
        k.e("v_mul_f32 v94, v%d, v92" % (EP+2*j))
        k.e("v_mul_f32 v95, v%d, v92" % (EP+2*j+1))
        k.e("v_cvt_pk_bf16_f32 v%d, v94, v95" % (PH+j))
    for j in range(10):
        k.e("v_mul_f32 v94, v%d, v93" % (EN+2*j))
        k.e("v_mul_f32 v95, v%d, v93" % (EN+2*j+1))
        k.e("v_cvt_pk_bf16_f32 v%d, v94, v95" % (PH+10+j))
    lk = k.newlabel("L_phik"); ldone = k.newlabel("L_phidone")
    k.e("s_cmp_eq_u32 s46, 1")
    k.e("s_cbranch_scc1 %s" % lk)
    k.e("s_lshl_b32 s33, s29, 2"); k.e("s_add_u32 s33, s33, s43")
    k.e("s_mul_i32 s33, s33, 80")
    k.e("v_add_u32 v12, s42, v1")
    k.e("v_mul_u32_u24 v12, 2560, v12")
    k.e("v_add_u32 v12, s33, v12")
    for j in range(5):
        k.vm("buffer_store_dwordx4 v[%d:%d], v12, s[20:23], 0 offen offset:%d" % (PH+4*j, PH+4*j+3, 16*j), "st")
    k.e("s_branch %s" % ldone)
    k.label(lk)
    k.e("s_mul_i32 s33, s43, 6144")
    k.e("s_add_u32 s33, s33, %d" % PHIK_BASE)
    k.e("v_mul_u32_u24 v12, 96, v1")
    k.e("v_add_u32 v12, s33, v12")
    for j in range(5):
        k.e("ds_write_b128 v12, v[%d:%d] offset:%d" % (PH+4*j, PH+4*j+3, 16*j))
    k.label(ldone)
    k.e("s_waitcnt lgkmcnt(0)")
    k.e("s_barrier")
    k.stamp(7)
    k.c("---- partial kv = phi_k^T [v | 1] for head hh = wave (waves 0..3)")
    lfin = k.newlabel("L_kv_skip")
    k.e("s_cmp_ge_u32 s30, 4")
    k.e("s_cbranch_scc1 %s" % lfin)
    k.e("v_lshrrev_b32 v13, 2, v3")
    k.e("v_lshl_add_u32 v13, v2, 2, v13")
    k.e("v_and_b32 v14, 3, v3")
    k.e("v_mul_u32_u24 v15, 96, v13")
    k.e("v_lshl_add_u32 v15, v14, 3, v15")
    k.e("s_mul_i32 s33, s30, 6144")
    k.e("s_add_u32 s33, s33, %d" % PHIK_BASE)
    k.e("v_add_u32 v15, s33, v15")
    k.e("v_mul_u32_u24 v16, %d, v13" % T_STRIDE)
    k.e("v_lshl_add_u32 v16, v14, 3, v16")
    k.e("s_mul_i32 s33, s30, 40")
    k.e("s_add_u32 s33, s33, %d" % (T_BASE + 320))
    k.e("v_add_u32 v16, s33, v16")
    KF = 20
    VF = 44
    KD = 60
    for ks in range(2):
        for mt in range(3):
            r = KF + (ks*3+mt)*4
            k.e("ds_read_b64_tr_b16 v[%d:%d], v15 offset:%d" % (r, r+1, ks*32*96 + mt*32))
            k.e("ds_read_b64_tr_b16 v[%d:%d], v15 offset:%d" % (r+2, r+3, ks*32*96 + mt*32 + 16*96))
        for nt in range(2):
            r = VF + (ks*2+nt)*4
            k.e("ds_read_b64_tr_b16 v[%d:%d], v16 offset:%d" % (r, r+1, ks*32*T_STRIDE + nt*32))
            k.e("ds_read_b64_tr_b16 v[%d:%d], v16 offset:%d" % (r+2, r+3, ks*32*T_STRIDE + nt*32 + 16*T_STRIDE))
    for r in range(24):
        k.e("v_mov_b32 v%d, 0" % (KD + r))
    k.e("v_mov_b32 v17, 0x3f803f80")
    k.e("v_cmp_eq_u32 vcc, 4, v3")
    k.e("s_waitcnt lgkmcnt(0)")
    for ks in range(2):
        r = VF + (ks*2+1)*4
        for q in range(4):
            k.e("v_cndmask_b32 v%d, v%d, v17, vcc" % (r+q, r+q))
    k.e("s_nop 1")
    for ks in range(2):
        for mt in range(3):
            for nt in range(2):
                a = KD + (mt*2+nt)*4
                kf = KF + (ks*3+mt)*4; vf = VF + (ks*2+nt)*4
                k.e("v_mfma_f32_16x16x32_bf16 v[%d:%d], v[%d:%d], v[%d:%d], v[%d:%d]" %
                    (a, a+3, kf, kf+3, vf, vf+3, a, a+3))
    k.e("s_nop 7"); k.e("s_nop 7")
    k.e("s_lshl_b32 s33, s28, 5")
    k.e("s_lshl_b32 s34, s29, 2")
    k.e("s_add_u32 s33, s33, s34")
    k.e("s_add_u32 s33, s33, s30")
    k.e("s_mul_i32 s33, s33, %d" % (21*160))
    k.e("v_mul_u32_u24 v12, 160, v3")
    k.e("v_lshl_add_u32 v12, v2, 4, v12")
    k.e("v_add_u32 v12, s33, v12")
    for nt in range(2):
        for mt in range(3):
            a = KD + (mt*2+nt)*4
            conds = []
            if nt == 1: conds.append("v_cmp_ge_u32 vcc, 4, v3")
            if mt == 2: conds.append("v_cmp_gt_u32 vcc, 2, v2")
            if conds:
                k.e("s_mov_b64 s[44:45], exec")
                for cnd in conds:
                    k.e(cnd)
                    k.e("s_and_b64 exec, exec, vcc")
            k.e("buffer_store_dwordx4 v[%d:%d], v12, s[24:27], 0 offen offset:%d" % (a, a+3, nt*16*160 + mt*64))
            if conds:
                k.e("s_mov_b64 exec, s[44:45]")
    k.label(lfin)
    k.e("s_waitcnt vmcnt(0)")

if __name__ == "__main__":
    k1 = gen_k1()
    txt = build_file(["dev build"], [(k1, (256,1,1), (512,1,1), K1_LDS)])
    open("k1.s", "w").write(txt)
    print("lines", txt.count("\n"))
```
